```python
import torch

def _softmax(x, axis=-1):
    return torch.softmax(x, dim=axis)
def _gelu(x):
    return torch.nn.functional.gelu(x, approximate="tanh")
def _silu(x):
    return torch.nn.functional.silu(x)
def _sigmoid(x):
    return torch.sigmoid(x)
def _layernorm(x, axis=-1, eps=1e-5):
    m = x.mean(dim=axis, keepdim=True)
    v = x.var(dim=axis, keepdim=True, unbiased=False)
    return (x - m) / torch.sqrt(v + eps)
def _scatter_add(tgt, idx, src, axis=0):
    return tgt.clone().index_add_(axis, idx, src)
def _segment_sum(src, seg, n):
    out = torch.zeros((n,) + src.shape[1:], dtype=src.dtype)
    return out.index_add_(0, seg, src)
def _pad(x, pw):
    flat = tuple(v for pair in reversed(pw) for v in pair)
    return torch.nn.functional.pad(x, flat)

kernel_name = 'standalone__batchnorm__sampling'

def setup_inputs():

    _w = (lambda a: (lambda t: t.to(torch.bfloat16) if t.is_floating_point() else t)(torch.as_tensor(a)))
    B, S, C = 1024, 8, 576
    K = 3
    return {
        "x": _w((lambda *s: torch.randn(*s, dtype=torch.bfloat16) * 0.05)(B, S, C)),
        "w": _w((lambda *s: torch.randn(*s, dtype=torch.bfloat16) * 0.05)(K, C, C) * (1.0 / (K * C) ** 0.5)),
        "mean": _w((lambda *s: torch.randn(*s, dtype=torch.bfloat16) * 0.05)(C) * 0.1),
        "var": _w(torch.abs((lambda *s: torch.randn(*s, dtype=torch.bfloat16) * 0.05)(C)) + 0.5),
        "g": _w((lambda *s: torch.randn(*s, dtype=torch.bfloat16) * 0.05)(C) + 1.0),
        "b": _w((lambda *s: torch.randn(*s, dtype=torch.bfloat16) * 0.05)(C) * 0.1),
    }

def reference(x, w, mean, var, g, b):
    K = 3
    P = K // 2
    S = x.shape[1]
    xp = _pad(x, ((0, 0), (P, P), (0, 0)))
    y = sum(torch.einsum('bsc,cd->bsd', xp[:, k:k + S, :], w[k]) for k in range(K))
    inv_std = 1.0 / torch.sqrt(var + 1e-5)
    y = (y - mean) * (g * inv_std) + b
    return _silu(y)
```

```python
import sys

NAME = "standalone__batchnorm__sampling_kernel"
HEADER = """; Kernarg layout for this problem (72 bytes, ptrs only, base s[0:1]):
"""
XBYTES = 1024 * 8 * 576 * 2
WBYTES = 3 * 576 * 576 * 2
BG = 16 * 9216
TAP = 576 * 1152
NEG_LOG2E = 0xbfb8aa3b
OOB = 0x40000000
STASH = 159744

sX, sW, sO = 20, 24, 28
sWAVE, sL, sRHO, sCB, sG, sA = 36, 37, 38, 39, 40, 41
vXa, vXq, vW0, vW1, vWq0, vWq1, bXa, bW, vOut = 1, 2, 3, 4, 5, 6, 7, 8, 9
ACC = 16
XB = [88, 120]
XQ = 152
WB = [164, 188]
WQ = 212
CST = 236


class Gen:
    def __init__(self, diag=False, store_flags="", prio=0, dma_flags_x="", dma_flags_w=""):
        self.L = []
        self.diag = diag
        self.store_flags = store_flags
        self.prio = prio
        self.dfx = dma_flags_x
        self.dfw = dma_flags_w

    def a(self, s):
        self.L.append("    " + s)

    def lab(self, s):
        self.L.append(s + ":")

    def acc(self, row, n):
        r = ACC + (row * 2 + n) * 4
        return f"v[{r}:{r+3}]"

    @staticmethod
    def q(r):
        return f"v[{r}:{r+3}]"

    def stamp(self, k):
        if self.diag:
            self.a(f"s_memtime s[{64+2*k}:{65+2*k}]")

    def diag_out(self, nst):
        if not self.diag:
            return
        a = self.a
        a("s_memrealtime s[62:63]")
        a("s_waitcnt lgkmcnt(0)")
        a("s_mov_b32 s32, s18"); a("s_mov_b32 s33, s19"); a("s_mov_b32 s34, 0x100000"); a("s_mov_b32 s35, 0x20000")
        a("v_mov_b32 v10, 0")
        for k in range(nst):
            a(f"v_writelane_b32 v10, s{64+2*k}, {k}")
        a("v_writelane_b32 v10, s60, 30")
        a("v_writelane_b32 v10, s62, 31")
        a(f"s_lshl_b32 s3, s2, 3"); a(f"s_add_u32 s3, s3, s{sWAVE}"); a("s_lshl_b32 s3, s3, 7")
        a("v_mbcnt_lo_u32_b32 v11, -1, 0"); a("v_mbcnt_hi_u32_b32 v11, -1, v11")
        a("v_lshlrev_b32 v11, 2, v11")
        a("s_mov_b64 exec, 0xffffffff")
        a("buffer_store_dword v10, v11, s[32:35], s3 offen")

    def entry(self):
        a = self.a
        if self.diag:
            a("s_memrealtime s[60:61]")
        self.stamp(0)
        a("s_cmp_ge_u32 s2, 256")
        a("s_cbranch_scc1 L_end")
        a("s_load_dwordx4 s[4:7], s[0:1], 0")
        a("s_load_dwordx4 s[8:11], s[0:1], 16")
        a("s_load_dwordx4 s[12:15], s[0:1], 32")
        a("s_load_dwordx2 s[16:17], s[0:1], 48")
        if self.diag:
            a("s_load_dwordx2 s[18:19], s[0:1], 64")
        a("v_lshrrev_b32 v1, 6, v0")
        a("v_and_b32 v0, 63, v0")
        a(f"s_and_b32 s{sL}, s2, 7")
        a(f"v_readfirstlane_b32 s{sWAVE}, v1")
        a(f"s_lshl_b32 s{sL}, s{sL}, 5")
        a("s_lshr_b32 s3, s2, 3")
        a(f"s_add_u32 s{sL}, s{sL}, s3")
        a(f"s_mul_i32 s{sRHO}, s{sL}, 7282")
        a(f"s_lshr_b32 s{sRHO}, s{sRHO}, 16")
        a(f"s_mul_i32 s3, s{sRHO}, 9")
        a(f"s_sub_u32 s{sCB}, s{sL}, s3")
        a(f"s_lshr_b32 s{sG}, s{sRHO}, 2")
        a(f"s_and_b32 s{sA}, s{sRHO}, 3")
        a(f"s_mov_b32 s{sX+2}, {XBYTES}"); a(f"s_mov_b32 s{sX+3}, 0x20000")
        a(f"s_mov_b32 s{sW+2}, {WBYTES}"); a(f"s_mov_b32 s{sW+3}, 0x20000")
        a(f"s_mov_b32 s{sO+2}, {XBYTES}"); a(f"s_mov_b32 s{sO+3}, 0x20000")
        a(f"s_cmp_ge_u32 s{sL}, 252")
        a("s_cbranch_scc1 L_special")
        a(f"s_cmp_lt_u32 s{sWAVE}, 4")
        a("s_cbranch_scc1 L_cons_n")

    def srds(self):
        a = self.a
        a("s_waitcnt lgkmcnt(0)")
        a(f"s_mov_b32 s{sX}, s4"); a(f"s_mov_b32 s{sX+1}, s5")
        a(f"s_mov_b32 s{sW}, s6"); a(f"s_mov_b32 s{sW+1}, s7")
        a(f"s_mov_b32 s{sO}, s16"); a(f"s_mov_b32 s{sO+1}, s17")

    def loader(self, sp):
        a = self.a
        tag = "s" if sp else "n"
        nB, nA = (9, 2) if sp else (3, 5)
        BSL = 36864 if sp else 12288
        ASL = 16384 if sp else 40960
        AREG = 3 * BSL
        sLW, sHB, sRP = 42, 43, 44
        sROW = 45
        sBO = 45 + 4
        sLA, sLB, sOA, sOB, sCNT = 80, 81, 82, 83, 84
        sT1, sT2 = 55, 56
        vA, vA16, vA18, vB = 2, 3, 4, 5
        a(f"s_and_b32 s{sLW}, s{sWAVE}, 3")
        a(f"s_and_b32 s{sHB}, s{sWAVE}, 1")
        a(f"s_bfe_u32 s{sRP}, s{sWAVE}, 0x10001")
        a("v_lshrrev_b32 v6, 3, v0")
        a("v_and_b32 v7, 7, v0")
        a("v_bfe_u32 v8, v0, 4, 1")
        a(f"s_lshl_b32 s3, s{sHB}, 1")
        a("v_or_b32 v8, s3, v8")
        a("v_lshlrev_b32 v8, 1, v8")
        a("v_xor_b32 v8, v8, v7")
        a("v_lshlrev_b32 v8, 4, v8")
        a("v_mul_u32_u24 v9, 1152, v6")
        a(f"s_mul_i32 s3, s{sLW}, {8*1152}")
        if not sp:
            a(f"s_lshl_b32 s46, s{sCB}, 7")
            a("s_add_u32 s3, s3, s46")
        a(f"v_add3_u32 v{vB}, v8, v9, s3")
        a(f"s_lshl_b32 s3, s{sHB}, 3")
        a("v_add_u32 v6, s3, v6")
        a("v_lshrrev_b32 v8, 1, v6")
        a("v_xor_b32 v8, v8, v7")
        a("v_lshlrev_b32 v8, 4, v8")
        a("v_mul_u32_u24 v9, 9216, v6")
        a(f"v_add_u32 v{vA}, v8, v9")
        a(f"s_mul_i32 s3, s{sRP}, 1152")
        if sp:
            a(f"s_sub_u32 s{sA}, s{sL}, 252")
            for k, r0 in enumerate((0, 2, 4, 6)):
                a(f"s_add_u32 s{sROW+k}, s3, {63*BG + r0*1152}")
            a(f"s_lshl_b32 s3, s{sA}, 8")
            for u in range(3):
                for t in range(3):
                    if u < 2:
                        a(f"s_add_u32 s{sBO+3*u+t}, s3, {t*TAP + u*128}")
                    else:
                        a(f"s_mov_b32 s{sBO+3*u+t}, {t*TAP + 1024}")
        else:
            a(f"s_mul_i32 s57, s{sG}, {9*BG}")
            a("s_add_u32 s3, s3, s57")
            a(f"s_mul_i32 s57, s{sA}, {2*BG}")
            a("s_add_u32 s57, s57, s3")
            for k in range(8):
                r0 = 2 * k
                off = r0 * 1152 if r0 < 8 else BG + (r0 - 8) * 1152
                a(f"s_add_u32 s{sROW+k}, s57, {off}")
            a(f"s_mul_i32 s57, s{sA}, 2304")
            a("s_add_u32 s57, s57, s3")
            a(f"s_add_u32 s{sROW+8}, s57, {8*BG - 1152}")
            a(f"s_add_u32 s{sROW+9}, s57, {8*BG + 1152}")
            a(f"s_mov_b32 s{sT1}, {TAP}")
            a(f"s_mov_b32 s{sT2}, {2*TAP}")
            a(f"s_lshl_b32 s3, s{sA}, 1"); a(f"s_add_u32 s3, s3, s{sRP}")
            a("s_cmp_eq_u32 s3, 0")
            a(f"s_cselect_b32 s57, {OOB}, 0")
            a(f"v_add_u32 v{vA16}, s57, v{vA}")
            a("s_cmp_eq_u32 s3, 7")
            a(f"s_cselect_b32 s57, {OOB}, 0")
            a(f"v_add_u32 v{vA18}, s57, v{vA}")
        a(f"s_lshl_b32 s{sLB}, s{sLW}, 10")
        a(f"s_lshl_b32 s3, s{sRP}, 11"); a(f"s_lshl_b32 s87, s{sHB}, 10")
        a("s_add_u32 s3, s3, s87"); a(f"s_add_u32 s{sLA}, s3, {AREG}")
        self.srds()
        self.stamp(1)

        def issueB(base, static_off=0):
            for e in range(nB):
                if sp:
                    u, t = divmod(e, 3)
                    a(f"s_add_u32 m0, s{base}, {static_off + u*12288 + t*4096}")
                    so = f"s{sBO+e}"
                else:
                    a(f"s_add_u32 m0, s{base}, {static_off + e*4096}")
                    so = ["0", f"s{sT1}", f"s{sT2}"][e]
                a("s_nop 0")
                a(f"buffer_load_dwordx4 v{vB}, s[{sW}:{sW+3}], {so} offen {self.dfw} lds")
            a(f"v_add_u32 v{vB}, {32*1152}, v{vB}")

        def issueA(h, base, static_off=0):
            for j in range(nA):
                k = h * nA + j
                r0 = 2 * k
                a(f"s_add_u32 m0, s{base}, {static_off + r0*2048}")
                va = vA
                if not sp and r0 == 16: va = vA16
                if not sp and r0 == 18: va = vA18
                a("s_nop 0")
                a(f"buffer_load_dwordx4 v{va}, s[{sX}:{sX+3}], s{sROW+k} offen {self.dfx} lds")
            if h == 1:
                a(f"v_add_u32 v{vA}, 128, v{vA}")
                if not sp:
                    a(f"v_add_u32 v{vA16}, 128, v{vA16}")
                    a(f"v_add_u32 v{vA18}, 128, v{vA18}")

        issueB(sLB, 0)
        issueA(0, sLA, 0); issueA(1, sLA, 0)
        issueB(sLB, BSL)
        issueA(0, sLA, ASL); issueA(1, sLA, ASL)
        issueB(sLB, 2 * BSL)
        issueA(0, sLA, 2 * ASL)
        self.stamp(2)
        a(f"s_waitcnt vmcnt({2*nB+3*nA})")
        self.stamp(3)
        a("s_barrier")
        a(f"s_waitcnt vmcnt({nB+3*nA})")
        a("s_barrier")
        a(f"s_mov_b32 s{sOB}, s{sLB}")
        a(f"s_add_u32 s{sOA}, s{sLA}, {2*ASL}")
        a(f"s_add_u32 s85, s{sLB}, {3*BSL}")
        a(f"s_add_u32 s86, s{sLA}, {3*ASL}")

        def advB():
            a(f"s_add_u32 s{sOB}, s{sOB}, {BSL}")
            a(f"s_cmp_eq_u32 s{sOB}, s85")
            a(f"s_cselect_b32 s{sOB}, s{sLB}, s{sOB}")

        def advA():
            a(f"s_add_u32 s{sOA}, s{sOA}, {ASL}")
            a(f"s_cmp_eq_u32 s{sOA}, s86")
            a(f"s_cselect_b32 s{sOA}, s{sLA}, s{sOA}")

        a(f"s_mov_b32 s{sCNT}, 6")
        self.lab(f"L_lloop_{tag}")
        issueB(sOB); advB()
        issueA(1, sOA); advA()
        a(f"s_waitcnt vmcnt({nB+2*nA})")
        a("s_barrier")
        issueB(sOB); advB()
        issueA(0, sOA)
        a(f"s_sub_u32 s{sCNT}, s{sCNT}, 1")
        a(f"s_cmp_lg_u32 s{sCNT}, 0")
        a(f"s_waitcnt vmcnt({nB+2*nA})")
        a("s_barrier")
        a(f"s_cbranch_scc1 L_lloop_{tag}")
        issueB(sOB); advB()
        issueA(1, sOA)
        a(f"s_waitcnt vmcnt({nB+2*nA})")
        a("s_barrier")
        issueB(sOB); advB()
        a(f"s_waitcnt vmcnt({nB+nA})")
        a("s_barrier")
        issueB(sOB)
        a(f"s_waitcnt vmcnt({nB})")
        a("s_barrier")
        a("s_waitcnt vmcnt(0)")
        self.stamp(4)
        a("s_barrier")
        self.diag_out(5)
        a("s_endpgm")

    def params(self, dst, T):
        a = self.a
        U = T + 16
        for p in range(4):
            m, v, g, b = T + p, T + 4 + p, T + 8 + p, T + 12 + p
            x, y, z = U, U + 1, U + 2

            def rnd():
                a(f"v_cvt_pk_bf16_f32 v{z}, v{x}, v{y}")
                a(f"v_lshlrev_b32 v{x}, 16, v{z}")
                a(f"v_and_b32 v{y}, 0xffff0000, v{z}")
            a(f"v_lshlrev_b32 v{x}, 16, v{v}")
            a(f"v_and_b32 v{y}, 0xffff0000, v{v}")
            a(f"v_add_f32 v{x}, 0x3727c5ac, v{x}")
            a(f"v_add_f32 v{y}, 0x3727c5ac, v{y}")
            rnd()
            a(f"v_sqrt_f32 v{x}, v{x}")
            a(f"v_sqrt_f32 v{y}, v{y}")
            a("s_nop 0")
            rnd()
            a(f"v_rcp_f32 v{x}, v{x}")
            a(f"v_rcp_f32 v{y}, v{y}")
            a("s_nop 0")
            rnd()
            a(f"v_lshlrev_b32 v{z}, 16, v{g}")
            a(f"v_mul_f32 v{x}, v{x}, v{z}")
            a(f"v_and_b32 v{z}, 0xffff0000, v{g}")
            a(f"v_mul_f32 v{y}, v{y}, v{z}")
            rnd()
            a(f"v_lshlrev_b32 v{z}, 16, v{m}")
            a(f"v_lshlrev_b32 v{U+3}, 16, v{b}")
            a(f"v_fma_f32 v{z}, -v{z}, v{x}, v{U+3}")
            a(f"v_mul_f32 v{dst+8+2*p}, {NEG_LOG2E:#x}, v{z}")
            a(f"v_and_b32 v{z}, 0xffff0000, v{m}")
            a(f"v_and_b32 v{U+3}, 0xffff0000, v{b}")
            a(f"v_fma_f32 v{z}, -v{z}, v{y}, v{U+3}")
            a(f"v_mul_f32 v{dst+9+2*p}, {NEG_LOG2E:#x}, v{z}")
            a(f"v_mul_f32 v{dst+2*p}, {NEG_LOG2E:#x}, v{x}")
            a(f"v_mul_f32 v{dst+2*p+1}, {NEG_LOG2E:#x}, v{y}")

    def param_loads(self, T, voff):
        a = self.a
        for k, sp_ in enumerate((8, 10, 12, 14)):
            for n in range(2):
                a(f"global_load_dwordx2 v[{T+4*k+2*n}:{T+4*k+2*n+1}], v{voff}, s[{sp_}:{sp_+1}] offset:{32*n}")

    def epi_row(self, row, cst, soff, T):
        a = self.a
        r = ACC + row * 8
        for p in range(4):
            a(f"v_pk_fma_f32 v[{r+2*p}:{r+2*p+1}], v[{r+2*p}:{r+2*p+1}], v[{cst+2*p}:{cst+2*p+1}], v[{cst+8+2*p}:{cst+9+2*p}]")
        for i in range(8):
            a(f"v_exp_f32 v{T+i}, v{r+i}")
        for p in range(4):
            a(f"v_pk_fma_f32 v[{T+2*p}:{T+2*p+1}], v[{T+2*p}:{T+2*p+1}], s[58:59], s[58:59]")
        for i in range(8):
            a(f"v_rcp_f32 v{T+i}, v{T+i}")
        for p in range(4):
            a(f"v_pk_mul_f32 v[{T+2*p}:{T+2*p+1}], v[{T+2*p}:{T+2*p+1}], v[{r+2*p}:{r+2*p+1}]")
        for p in range(4):
            a(f"v_cvt_pk_bf16_f32 v{r+p}, v{T+2*p}, v{T+2*p+1}")
        a("s_nop 1")
        a(f"v_permlane16_swap_b32 v{r}, v{r+2}")
        a(f"v_permlane16_swap_b32 v{r+1}, v{r+3}")
        a(f"buffer_store_dwordx4 v[{r}:{r+3}], v{vOut}, s[{sO}:{sO+3}], {soff} offen {self.store_flags}")

    def consumer(self, sp):
        a = self.a
        tag = "s" if sp else "n"
        BSL = 36864 if sp else 12288
        ASL = 16384 if sp else 40960
        AREG = 3 * BSL
        sHM, sHN, sDQ, sDWQ, sOA, sOB, sCNT, sSK0, sSK2, sOM, sOQ = 42, 43, 44, 45, 46, 47, 48, 49, 50, 51, 52
        if self.prio:
            a(f"s_setprio {self.prio}")
        a(f"s_lshr_b32 s{sHM}, s{sWAVE}, 1")
        a(f"s_and_b32 s{sHN}, s{sWAVE}, 1")
        if sp:
            a(f"s_sub_u32 s{sA}, s{sL}, 252")
            a(f"s_lshl_b32 s{sCB}, s{sA}, 1")
            a(f"s_add_u32 s{sCB}, s{sCB}, s{sHM}")
        a("v_lshrrev_b32 v10, 4, v0")
        a("v_and_b32 v11, 15, v0")
        a(f"s_lshl_b32 s3, s{sHN}, 6")
        a(f"s_lshl_b32 s53, s{sCB}, 7")
        a("s_add_u32 s53, s53, s3")
        a("v_lshl_add_u32 v12, v10, 3, s53")
        if sp:
            a("s_add_u32 s54, s3, 1024")
            a("v_lshl_add_u32 v13, v10, 3, s54")
        a("v_lshrrev_b32 v14, 1, v11")
        a("v_xor_b32 v14, v14, v10")
        a("v_lshlrev_b32 v14, 4, v14")
        a("v_lshl_add_u32 v14, v11, 7, v14")
        if sp:
            a(f"v_add_u32 v{bXa}, {AREG}, v14")
            a(f"s_lshl_b32 s3, s{sA}, 1"); a(f"s_add_u32 s3, s3, s{sHM}")
            a("s_cmp_eq_u32 s3, 0"); a(f"s_cselect_b32 s{sSK0}, 1, 0")
            a("s_cmp_eq_u32 s3, 7"); a(f"s_cselect_b32 s{sSK2}, 1, 0")
            a(f"s_mul_i32 s{sOQ}, s3, 1152")
            a(f"s_add_u32 s{sOQ}, s{sOQ}, {63*BG}")
            a(f"s_add_u32 s{sOQ}, s{sOQ}, s54")
            a(f"s_add_u32 s{sOM}, s53, {63*BG}")
            a("s_lshl_b32 s3, s3, 11")
            a(f"s_sub_u32 s{sDQ}, s3, 2048")
            a(f"s_mul_i32 s55, s{sHM}, 12288")
            a(f"s_sub_u32 s{sDWQ}, 24576, s55")
        else:
            a(f"s_lshl_b32 s3, s{sHM}, 14")
            a(f"s_add_u32 s3, s3, {AREG}")
            a(f"v_add_u32 v{bXa}, s3, v14")
            a(f"s_mul_i32 s3, s{sHM}, {7*2048}")
            a(f"s_sub_u32 s{sDQ}, {16*2048}, s3")
            a(f"s_mul_i32 s3, s{sG}, {9*BG}")
            a("s_add_u32 s3, s3, s53")
            a(f"s_lshl_b32 s55, s{sA}, 1"); a(f"s_add_u32 s55, s55, s{sHM}")
            a(f"s_mul_i32 s{sOM}, s55, {BG}")
            a(f"s_add_u32 s{sOM}, s{sOM}, s3")
            a(f"s_mul_i32 s{sOQ}, s55, 1152")
            a(f"s_add_u32 s{sOQ}, s{sOQ}, s3")
            a(f"s_add_u32 s{sOQ}, s{sOQ}, {8*BG}")
            a("s_mov_b32 s55, 0")
        a("v_bfe_u32 v14, v0, 2, 2")
        a("v_lshl_add_u32 v15, v10, 3, v14")
        a("v_lshrrev_b32 v14, 1, v14")
        a("v_and_b32 v16, 1, v10")
        a("v_lshl_or_b32 v14, v16, 1, v14")
        a(f"s_lshl_b32 s3, s{sHN}, 1")
        a("v_xor_b32 v14, s3, v14")
        a("v_lshlrev_b32 v14, 5, v14")
        a("v_lshl_add_u32 v14, v15, 7, v14")
        a("v_and_b32 v15, 3, v0")
        a("v_lshl_add_u32 v14, v15, 3, v14")
        a(f"v_add_u32 v{bW}, s55, v14")
        a("v_mul_u32_u24 v14, 9216, v11")
        a("v_lshlrev_b32 v16, 5, v16")
        a("v_lshrrev_b32 v15, 1, v10")
        a("v_lshlrev_b32 v15, 4, v15")
        a(f"v_add3_u32 v{vOut}, v14, v15, v16")
        a(f"s_mov_b32 s58, {NEG_LOG2E:#x}"); a(f"s_mov_b32 s59, {NEG_LOG2E:#x}")
        self.srds()
        self.stamp(1)
        self.param_loads(XB[0], 12)
        if sp:
            self.param_loads(XB[1], 13)
            a(f"s_lshl_b32 s3, s{sHN}, 8"); a(f"s_add_u32 s3, s3, {STASH + 2048}")
            a("v_lshl_add_u32 v13, v10, 6, s3")
        for i in range(0, 72, 2):
            a(f"v_mov_b64 v[{ACC+i}:{ACC+i+1}], 0")
        a(f"v_mov_b32 v{vXa}, v{bXa}")
        a(f"v_add_u32 v{vXq}, s{sDQ}, v{bXa}")
        a(f"v_mov_b32 v{vW0}, v{bW}")
        a(f"v_xor_b32 v{vW1}, 32, v{bW}")
        if sp:
            a(f"v_add_u32 v{vWq0}, s{sDWQ}, v{vW0}")
            a(f"v_add_u32 v{vWq1}, s{sDWQ}, v{vW1}")
        a("s_waitcnt vmcnt(0)")
        if sp:
            self.params(WB[1], XB[1])
            for j in range(4):
                a(f"ds_write_b128 v13, v[{WB[1]+4*j}:{WB[1]+4*j+3}] offset:{16*j}")
        self.params(CST, XB[0])
        a(f"s_mov_b32 s{sOA}, 0")
        a(f"s_mov_b32 s{sOB}, 0")
        a(f"s_mov_b32 s{sCNT}, 9")
        if sp:
            a("s_waitcnt lgkmcnt(0)")
        self.stamp(2)
        a("s_barrier")
        self.stamp(3)

        def rdW(buf):
            o = []
            for t in range(3):
                for n in range(2):
                    for hf in range(2):
                        r = WB[buf] + (t * 2 + n) * 4 + 2 * hf
                        o.append(f"ds_read_b64_tr_b16 v[{r}:{r+1}], v{[vW0, vW1][n]} offset:{t*4096 + hf*512}")
            return o

        def rdWq():
            o = []
            for t in range(3):
                for n in range(2):
                    for hf in range(2):
                        r = WQ + (t * 2 + n) * 4 + 2 * hf
                        o.append(f"ds_read_b64_tr_b16 v[{r}:{r+1}], v{[vWq0, vWq1][n]} offset:{t*4096 + hf*512}")
            return o

        def rdX(buf):
            return [f"ds_read_b128 {self.q(XB[buf]+4*s)}, v{vXa} offset:{s*2048}" for s in range(8)]

        def rdXq():
            return [f"ds_read_b128 {self.q(XQ+4*j)}, v{vXq} offset:{j*2048}" for j in range(3)]

        def updB():
            o = [f"s_add_u32 s{sOB}, s{sOB}, {BSL}", f"s_cmp_eq_u32 s{sOB}, {3*BSL}", f"s_cselect_b32 s{sOB}, 0, s{sOB}",
                 f"v_add_u32 v{vW0}, s{sOB}, v{bW}", f"v_xor_b32 v{vW1}, 32, v{vW0}"]
            if sp:
                o += [f"v_add_u32 v{vWq0}, s{sDWQ}, v{vW0}", f"v_add_u32 v{vWq1}, s{sDWQ}, v{vW1}"]
            return o

        def updA(newstage):
            if not newstage:
                return [f"v_xor_b32 v{vXa}, 64, v{vXa}", f"v_xor_b32 v{vXq}, 64, v{vXq}"]
            return [f"s_add_u32 s{sOA}, s{sOA}, {ASL}", f"s_cmp_eq_u32 s{sOA}, {3*ASL}", f"s_cselect_b32 s{sOA}, 0, s{sOA}",
                    f"v_add_u32 v{vXa}, s{sOA}, v{bXa}", f"v_add_u32 v{vXq}, s{sDQ}, v{vXa}"]

        for s in rdW(0) + rdX(0) + rdXq() + (rdWq() if sp else []):
            a(s)
        for s in updB() + updA(False):
            a(s)
        a("s_waitcnt lgkmcnt(0)")
        a("s_barrier")
        self.stamp(4)

        def step(buf, uid, tail):
            nb = 1 - buf
            mf = []
            wq = WQ if sp else WB[buf]

            def W(base, t, n):
                return self.q(base + (t * 2 + n) * 4)
            pre = {}
            post = {}
            if sp:
                order = [(1, 0), (1, 1), (0, 0), (0, 1), (2, 0), (2, 1)]
                pre[2] = [f"s_cmp_lg_u32 s{sSK0}, 0", f"s_cbranch_scc1 L_sk0_{uid}"]
                pre[4] = [f"L_sk0_{uid}:", f"s_cmp_lg_u32 s{sSK2}, 0", f"s_cbranch_scc1 L_sk2_{uid}"]
                pre[6] = [f"L_sk2_{uid}:"]
            else:
                order = [(t, n) for n in range(2) for t in range(3)]
            for (t, n) in order:
                mf.append(f"v_mfma_f32_16x16x32_bf16 {self.acc(8, n)}, {W(wq, t, n)}, {self.q(XQ+4*t)}, {self.acc(8, n)}")
            for s in range(8):
                for n in range(2):
                    for t in range(3):
                        si = s + t - 1
                        if 0 <= si < 8:
                            mf.append(f"v_mfma_f32_16x16x32_bf16 {self.acc(s, n)}, {W(WB[buf], t, n)}, {self.q(XB[buf]+4*si)}, {self.acc(s, n)}")
            assert len(mf) == 50
            slots = [[] for _ in range(50)]
            early = rdW(nb) + rdX(nb)
            late = rdXq() + (rdWq() if sp else [])
            if sp:
                seq = list(range(6, 50))
                fill = early + late
            else:
                seq = list(range(0, 50))
                fill = early[:6] + late + early[6:]
            for k, s in enumerate(fill):
                slots[seq[k]].append(s)
            pos = seq[len(fill)]
            upd = updB() + updA(buf == 0) + tail
            per = 1 if len(upd) <= 49 - pos else 2
            for k, s in enumerate(upd):
                slots[pos + k // per].append(s)
            for m in range(50):
                for s in pre.get(m, []):
                    if s.endswith(":"):
                        self.lab(s[:-1])
                    else:
                        a(s)
                if m == 49:
                    a("s_waitcnt lgkmcnt(0)")
                a(mf[m])
                for s in slots[m]:
                    a(s)

        self.L.append(".p2align 6")
        self.lab(f"L_cloop_{tag}")
        step(0, tag + "0", [])
        a("s_barrier")
        step(1, tag + "1", [f"s_sub_u32 s{sCNT}, s{sCNT}, 1", f"s_cmp_lg_u32 s{sCNT}, 0"])
        a("s_barrier")
        a(f"s_cbranch_scc1 L_cloop_{tag}")
        self.stamp(5)
        T = XB[0]
        if sp:
            for j in range(4):
                a(f"ds_read_b128 v[{WB[1]+4*j}:{WB[1]+4*j+3}], v13 offset:{16*j}")
            a("s_waitcnt lgkmcnt(0)")
        a("s_nop 4")
        self.epi_row(8, WB[1] if sp else CST, f"s{sOQ}", T)
        for s in range(8):
            self.epi_row(s, CST, f"s{sOM}", T + 8 * ((s + 1) % 2))
            if s < 7:
                a(f"s_add_u32 s{sOM}, s{sOM}, 1152")
        self.stamp(6)
        if self.diag:
            a("s_waitcnt vmcnt(0)")
        self.stamp(7)
        self.diag_out(8)
        a("s_endpgm")

    def build(self):
        L = self.L
        L.append(HEADER + "; @launch grid=(256,1,1) block=(512,1,1) lds=163840")
        L.append('.amdgcn_target "amdgcn-amd-amdhsa--gfx950"')
        L.append(".text")
        L.append(f".globl {NAME}")
        L.append(".p2align 8")
        L.append(f".type {NAME},@function")
        self.lab(NAME)
        self.entry()
        self.loader(False)
        self.lab("L_cons_n")
        self.consumer(False)
        self.lab("L_special")
        self.a(f"s_cmp_lt_u32 s{sWAVE}, 4")
        self.a("s_cbranch_scc1 L_cons_s")
        self.loader(True)
        self.lab("L_cons_s")
        self.consumer(True)
        self.lab("L_end")
        self.a("s_endpgm")
        L.append('.section .rodata,"a"')
        L.append(".p2align 6")
        L.append(f".amdhsa_kernel {NAME}")
        L.append("  .amdhsa_next_free_vgpr 256\n  .amdhsa_next_free_sgpr 102\n  .amdhsa_accum_offset 256\n"
                 "  .amdhsa_group_segment_fixed_size 0\n  .amdhsa_kernarg_size 72\n  .amdhsa_user_sgpr_count 2\n"
                 "  .amdhsa_user_sgpr_kernarg_segment_ptr 1\n  .amdhsa_system_sgpr_workgroup_id_x 1\n"
                 "  .amdhsa_float_denorm_mode_32 3")
        L.append(".end_amdhsa_kernel")
        return "\n".join(L) + "\n"


if __name__ == "__main__":
    import argparse
    ap = argparse.ArgumentParser()
    ap.add_argument("-o", default="standalone__batchnorm__sampling.s")
    ap.add_argument("--diag", action="store_true")
    ap.add_argument("--store", default="")
    ap.add_argument("--prio", type=int, default=0)
    ap.add_argument("--dfx", default="")
    ap.add_argument("--dfw", default="")
    o = ap.parse_args()
    open(o.o, "w").write(Gen(o.diag, o.store, o.prio, o.dfx, o.dfw).build())
```

```python
import sys

NAME = "standalone__batchnorm__sampling_kernel"
HEADER = """; Kernarg layout for this problem (72 bytes, ptrs only, base s[0:1]):
"""
XBYTES = 1024 * 8 * 576 * 2
WBYTES = 3 * 576 * 576 * 2
BG = 16 * 9216
TAP = 576 * 1152
NEG_LOG2E = 0xbfb8aa3b
OOB = 0x40000000
STASH = 159744

sX, sW, sO = 20, 24, 28
sWAVE, sL, sRHO, sCB, sG, sA = 36, 37, 38, 39, 40, 41
vXa, vXq, vW0, vW1, vWq0, vWq1, bXa, bW, vOut = 1, 2, 3, 4, 5, 6, 7, 8, 9
ACC = 16
XB = [88, 120]
XQ = 152
WB = [164, 188]
WQ = 212
CST = 236


class Gen:
    def __init__(self, diag=False, store_flags="", prio=0, dma_flags_x="", dma_flags_w="", phases=1, pro=0):
        self.phases = phases
        self.pro = pro
        self.L = []
        self.diag = diag
        self.store_flags = store_flags
        self.prio = prio
        self.dfx = dma_flags_x
        self.dfw = dma_flags_w

    def a(self, s):
        self.L.append("    " + s)

    def lab(self, s):
        self.L.append(s + ":")

    def acc(self, row, n):
        r = ACC + (row * 2 + n) * 4
        return f"v[{r}:{r+3}]"

    @staticmethod
    def q(r):
        return f"v[{r}:{r+3}]"

    def stamp(self, k):
        if self.diag:
            self.a(f"s_memtime s[{64+2*k}:{65+2*k}]")

    def diag_out(self, nst):
        if not self.diag:
            return
        a = self.a
        a("s_memrealtime s[62:63]")
        a("s_waitcnt lgkmcnt(0)")
        a("s_mov_b32 s32, s18"); a("s_mov_b32 s33, s19"); a("s_mov_b32 s34, 0x100000"); a("s_mov_b32 s35, 0x20000")
        a("v_mov_b32 v10, v15")
        for k in range(nst):
            a(f"v_writelane_b32 v10, s{64+2*k}, {k}")
        a("v_writelane_b32 v10, s60, 30")
        a("v_writelane_b32 v10, s62, 31")
        a(f"s_lshl_b32 s3, s2, 3"); a(f"s_add_u32 s3, s3, s{sWAVE}"); a("s_lshl_b32 s3, s3, 7")
        a("v_mbcnt_lo_u32_b32 v11, -1, 0"); a("v_mbcnt_hi_u32_b32 v11, -1, v11")
        a("v_lshlrev_b32 v11, 2, v11")
        a("s_mov_b64 exec, 0xffffffff")
        a("buffer_store_dword v10, v11, s[32:35], s3 offen")

    def entry(self):
        a = self.a
        if self.diag:
            a("s_memrealtime s[60:61]")
        self.stamp(0)
        a("s_cmp_ge_u32 s2, 256")
        a("s_cbranch_scc1 L_end")
        a("s_load_dwordx4 s[4:7], s[0:1], 0")
        a("s_load_dwordx4 s[8:11], s[0:1], 16")
        a("s_load_dwordx4 s[12:15], s[0:1], 32")
        a("s_load_dwordx2 s[16:17], s[0:1], 48")
        if self.diag:
            a("s_load_dwordx2 s[18:19], s[0:1], 64")
        a("v_lshrrev_b32 v1, 6, v0")
        a("v_and_b32 v0, 63, v0")
        a(f"s_and_b32 s{sL}, s2, 7")
        a(f"v_readfirstlane_b32 s{sWAVE}, v1")
        a(f"s_lshl_b32 s{sL}, s{sL}, 5")
        a("s_lshr_b32 s3, s2, 3")
        a(f"s_add_u32 s{sL}, s{sL}, s3")
        a(f"s_mul_i32 s{sRHO}, s{sL}, 7282")
        a(f"s_lshr_b32 s{sRHO}, s{sRHO}, 16")
        a(f"s_mul_i32 s3, s{sRHO}, 9")
        a(f"s_sub_u32 s{sCB}, s{sL}, s3")
        a(f"s_lshr_b32 s{sG}, s{sRHO}, 2")
        a(f"s_and_b32 s{sA}, s{sRHO}, 3")
        a(f"s_mov_b32 s{sX+2}, {XBYTES}"); a(f"s_mov_b32 s{sX+3}, 0x20000")
        a(f"s_mov_b32 s{sW+2}, {WBYTES}"); a(f"s_mov_b32 s{sW+3}, 0x20000")
        a(f"s_mov_b32 s{sO+2}, {XBYTES}"); a(f"s_mov_b32 s{sO+3}, 0x20000")
        a(f"s_cmp_ge_u32 s{sL}, 252")
        a("s_cbranch_scc1 L_special")
        a(f"s_cmp_lt_u32 s{sWAVE}, 4")
        a("s_cbranch_scc1 L_cons_n")

    def srds(self):
        a = self.a
        a("s_waitcnt lgkmcnt(0)")
        a(f"s_mov_b32 s{sX}, s4"); a(f"s_mov_b32 s{sX+1}, s5")
        a(f"s_mov_b32 s{sW}, s6"); a(f"s_mov_b32 s{sW+1}, s7")
        a(f"s_mov_b32 s{sO}, s16"); a(f"s_mov_b32 s{sO+1}, s17")

    def loader(self, sp):
        a = self.a
        tag = "s" if sp else "n"
        nB, nA = (9, 2) if sp else (3, 5)
        BSL = 36864 if sp else 12288
        ASL = 16384 if sp else 40960
        AREG = 3 * BSL
        sLW, sHB, sRP = 42, 43, 44
        sROW = 45
        sBO = 45 + 4
        sLA, sLB, sOA, sOB, sCNT = 80, 81, 82, 83, 84
        sT1, sT2 = 55, 56
        vA, vA16, vA18, vB = 2, 3, 4, 5
        a(f"s_and_b32 s{sLW}, s{sWAVE}, 3")
        a(f"s_and_b32 s{sHB}, s{sWAVE}, 1")
        a(f"s_bfe_u32 s{sRP}, s{sWAVE}, 0x10001")
        a("v_lshrrev_b32 v6, 3, v0")
        a("v_and_b32 v7, 7, v0")
        a("v_bfe_u32 v8, v0, 4, 1")
        a(f"s_lshl_b32 s3, s{sHB}, 1")
        a("v_or_b32 v8, s3, v8")
        a("v_lshlrev_b32 v8, 1, v8")
        a("v_xor_b32 v8, v8, v7")
        a("v_lshlrev_b32 v8, 4, v8")
        a("v_mul_u32_u24 v9, 1152, v6")
        a(f"s_mul_i32 s3, s{sLW}, {8*1152}")
        if not sp:
            a(f"s_lshl_b32 s46, s{sCB}, 7")
            a("s_add_u32 s3, s3, s46")
        a(f"v_add3_u32 v{vB}, v8, v9, s3")
        a(f"s_lshl_b32 s3, s{sHB}, 3")
        a("v_add_u32 v6, s3, v6")
        a("v_lshrrev_b32 v8, 1, v6")
        a("v_xor_b32 v8, v8, v7")
        a("v_lshlrev_b32 v8, 4, v8")
        a("v_mul_u32_u24 v9, 9216, v6")
        a(f"v_add_u32 v{vA}, v8, v9")
        a(f"s_mul_i32 s3, s{sRP}, 1152")
        if sp:
            a(f"s_sub_u32 s{sA}, s{sL}, 252")
            for k, r0 in enumerate((0, 2, 4, 6)):
                a(f"s_add_u32 s{sROW+k}, s3, {63*BG + r0*1152}")
            a(f"s_lshl_b32 s3, s{sA}, 8")
            for u in range(3):
                for t in range(3):
                    if u < 2:
                        a(f"s_add_u32 s{sBO+3*u+t}, s3, {t*TAP + u*128}")
                    else:
                        a(f"s_mov_b32 s{sBO+3*u+t}, {t*TAP + 1024}")
        else:
            a(f"s_mul_i32 s57, s{sG}, {9*BG}")
            a("s_add_u32 s3, s3, s57")
            a(f"s_mul_i32 s57, s{sA}, {2*BG}")
            a("s_add_u32 s57, s57, s3")
            for k in range(8):
                r0 = 2 * k
                off = r0 * 1152 if r0 < 8 else BG + (r0 - 8) * 1152
                a(f"s_add_u32 s{sROW+k}, s57, {off}")
            a(f"s_mul_i32 s57, s{sA}, 2304")
            a("s_add_u32 s57, s57, s3")
            a(f"s_add_u32 s{sROW+8}, s57, {8*BG - 1152}")
            a(f"s_add_u32 s{sROW+9}, s57, {8*BG + 1152}")
            a(f"s_mov_b32 s{sT1}, {TAP}")
            a(f"s_mov_b32 s{sT2}, {2*TAP}")
            a(f"s_lshl_b32 s3, s{sA}, 1"); a(f"s_add_u32 s3, s3, s{sRP}")
            a("s_cmp_eq_u32 s3, 0")
            a(f"s_cselect_b32 s57, {OOB}, 0")
            a(f"v_add_u32 v{vA16}, s57, v{vA}")
            a("s_cmp_eq_u32 s3, 7")
            a(f"s_cselect_b32 s57, {OOB}, 0")
            a(f"v_add_u32 v{vA18}, s57, v{vA}")
        a(f"s_lshl_b32 s{sLB}, s{sLW}, 10")
        a(f"s_lshl_b32 s3, s{sRP}, 11"); a(f"s_lshl_b32 s87, s{sHB}, 10")
        a("s_add_u32 s3, s3, s87"); a(f"s_add_u32 s{sLA}, s3, {AREG}")
        sKA, sKB = 88, 89
        P = self.phases
        if P > 1:
            a(f"s_add_u32 s3, s{sCB}, s{sRHO}")
            a(f"s_mul_i32 s87, s3, {(65536 + P - 1)//P}")
            a("s_lshr_b32 s87, s87, 16")
            a(f"s_mul_i32 s87, s87, {P}")
            a("s_sub_u32 s3, s3, s87")
            mul = {2: 4, 3: 3, 4: 2, 5: 2, 9: 1}[P]
            a(f"s_mul_i32 s{sKA}, s3, {mul}")
            a(f"s_lshl_b32 s{sKB}, s{sKA}, 1")
            a(f"s_lshl_b32 s3, s{sKA}, 7")
            a(f"v_add_u32 v{vA}, s3, v{vA}")
            if not sp:
                a(f"v_add_u32 v{vA16}, s3, v{vA16}")
                a(f"v_add_u32 v{vA18}, s3, v{vA18}")
            a(f"s_mul_i32 s3, s{sKB}, {32*1152}")
            a(f"v_add_u32 v{vB}, s3, v{vB}")
            a(f"s_mov_b32 s93, {32*1152}")
            a(f"s_movk_i32 s94, 128")
        self.srds()
        self.stamp(1)

        def issueB(base, static_off=0):
            for e in range(nB):
                if sp:
                    u, t = divmod(e, 3)
                    a(f"s_add_u32 m0, s{base}, {static_off + u*12288 + t*4096}")
                    so = f"s{sBO+e}"
                else:
                    a(f"s_add_u32 m0, s{base}, {static_off + e*4096}")
                    so = ["0", f"s{sT1}", f"s{sT2}"][e]
                a("s_nop 0")
                a(f"buffer_load_dwordx4 v{vB}, s[{sW}:{sW+3}], {so} offen {self.dfw} lds")
            if P > 1:
                a(f"s_add_u32 s{sKB}, s{sKB}, 1")
                a(f"s_cmp_eq_u32 s{sKB}, 18")
                a(f"s_cselect_b32 s3, {(-17*32*1152) & 0xffffffff:#x}, s93")
                a(f"s_cselect_b32 s{sKB}, 0, s{sKB}")
                a(f"v_add_u32 v{vB}, s3, v{vB}")
            else:
                a(f"v_add_u32 v{vB}, {32*1152}, v{vB}")

        def issueA(h, base, static_off=0):
            for j in range(nA):
                k = h * nA + j
                r0 = 2 * k
                a(f"s_add_u32 m0, s{base}, {static_off + r0*2048}")
                va = vA
                if not sp and r0 == 16: va = vA16
                if not sp and r0 == 18: va = vA18
                a("s_nop 0")
                a(f"buffer_load_dwordx4 v{va}, s[{sX}:{sX+3}], s{sROW+k} offen {self.dfx} lds")
            if h == 1:
                d = "128"
                if P > 1:
                    a(f"s_add_u32 s{sKA}, s{sKA}, 1")
                    a(f"s_cmp_eq_u32 s{sKA}, 9")
                    a(f"s_cselect_b32 s3, {(-8*128) & 0xffffffff:#x}, s94")
                    a(f"s_cselect_b32 s{sKA}, 0, s{sKA}")
                    d = "s3"
                a(f"v_add_u32 v{vA}, {d}, v{vA}")
                if not sp:
                    a(f"v_add_u32 v{vA16}, {d}, v{vA16}")
                    a(f"v_add_u32 v{vA18}, {d}, v{vA18}")

        if self.pro == 0:
            issueB(sLB, 0)
            issueA(0, sLA, 0); issueA(1, sLA, 0)
            issueB(sLB, BSL)
            issueA(0, sLA, ASL); issueA(1, sLA, ASL)
            issueB(sLB, 2 * BSL)
            issueA(0, sLA, 2 * ASL)
            self.stamp(2)
            a(f"s_waitcnt vmcnt({2*nB+3*nA})")
            self.stamp(3)
            a("s_barrier")
            a(f"s_waitcnt vmcnt({nB+3*nA})")
            a("s_barrier")
        elif self.pro == 1:
            issueB(sLB, 0)
            issueA(0, sLA, 0); issueA(1, sLA, 0)
            issueB(sLB, BSL)
            issueA(0, sLA, ASL)
            self.stamp(2)
            a(f"s_waitcnt vmcnt({nB+nA})")
            self.stamp(3)
            a("s_barrier")
            issueA(1, sLA, ASL)
            a(f"s_waitcnt vmcnt({2*nA})")
            a("s_barrier")
            issueB(sLB, 2 * BSL)
            issueA(0, sLA, 2 * ASL)
        elif self.pro == 2:
            issueB(sLB, 0)
            issueA(0, sLA, 0); issueA(1, sLA, 0)
            issueB(sLB, BSL)
            issueA(0, sLA, ASL); issueA(1, sLA, ASL)
            self.stamp(2)
            a(f"s_waitcnt vmcnt({nB+2*nA})")
            self.stamp(3)
            a("s_barrier")
            issueB(sLB, 2 * BSL)
            a(f"s_waitcnt vmcnt({2*nA+nB})")
            a("s_barrier")
            issueA(0, sLA, 2 * ASL)
        a(f"s_mov_b32 s{sOB}, s{sLB}")
        a(f"s_add_u32 s{sOA}, s{sLA}, {2*ASL}")
        a(f"s_add_u32 s85, s{sLB}, {3*BSL}")
        a(f"s_add_u32 s86, s{sLA}, {3*ASL}")

        def advB():
            a(f"s_add_u32 s{sOB}, s{sOB}, {BSL}")
            a(f"s_cmp_eq_u32 s{sOB}, s85")
            a(f"s_cselect_b32 s{sOB}, s{sLB}, s{sOB}")

        def advA():
            a(f"s_add_u32 s{sOA}, s{sOA}, {ASL}")
            a(f"s_cmp_eq_u32 s{sOA}, s86")
            a(f"s_cselect_b32 s{sOA}, s{sLA}, s{sOA}")

        a(f"s_mov_b32 s{sCNT}, 6")
        self.lab(f"L_lloop_{tag}")
        issueB(sOB); advB()
        issueA(1, sOA); advA()
        a(f"s_waitcnt vmcnt({nB+2*nA})")
        a("s_barrier")
        issueB(sOB); advB()
        issueA(0, sOA)
        a(f"s_sub_u32 s{sCNT}, s{sCNT}, 1")
        a(f"s_cmp_lg_u32 s{sCNT}, 0")
        a(f"s_waitcnt vmcnt({nB+2*nA})")
        a("s_barrier")
        a(f"s_cbranch_scc1 L_lloop_{tag}")
        issueB(sOB); advB()
        issueA(1, sOA)
        a(f"s_waitcnt vmcnt({nB+2*nA})")
        a("s_barrier")
        issueB(sOB); advB()
        a(f"s_waitcnt vmcnt({nB+nA})")
        a("s_barrier")
        issueB(sOB)
        a(f"s_waitcnt vmcnt({nB})")
        a("s_barrier")
        a("s_waitcnt vmcnt(0)")
        self.stamp(4)
        a("s_barrier")
        self.diag_out(5)
        a("s_endpgm")

    def params(self, dst, T):
        a = self.a
        U = T + 16
        for p in range(4):
            m, v, g, b = T + p, T + 4 + p, T + 8 + p, T + 12 + p
            x, y, z = U, U + 1, U + 2

            def rnd():
                a(f"v_cvt_pk_bf16_f32 v{z}, v{x}, v{y}")
                a(f"v_lshlrev_b32 v{x}, 16, v{z}")
                a(f"v_and_b32 v{y}, 0xffff0000, v{z}")
            a(f"v_lshlrev_b32 v{x}, 16, v{v}")
            a(f"v_and_b32 v{y}, 0xffff0000, v{v}")
            a(f"v_add_f32 v{x}, 0x3727c5ac, v{x}")
            a(f"v_add_f32 v{y}, 0x3727c5ac, v{y}")
            rnd()
            a(f"v_sqrt_f32 v{x}, v{x}")
            a(f"v_sqrt_f32 v{y}, v{y}")
            a("s_nop 0")
            rnd()
            a(f"v_rcp_f32 v{x}, v{x}")
            a(f"v_rcp_f32 v{y}, v{y}")
            a("s_nop 0")
            rnd()
            a(f"v_lshlrev_b32 v{z}, 16, v{g}")
            a(f"v_mul_f32 v{x}, v{x}, v{z}")
            a(f"v_and_b32 v{z}, 0xffff0000, v{g}")
            a(f"v_mul_f32 v{y}, v{y}, v{z}")
            rnd()
            a(f"v_lshlrev_b32 v{z}, 16, v{m}")
            a(f"v_lshlrev_b32 v{U+3}, 16, v{b}")
            a(f"v_fma_f32 v{z}, -v{z}, v{x}, v{U+3}")
            a(f"v_mul_f32 v{dst+8+2*p}, {NEG_LOG2E:#x}, v{z}")
            a(f"v_and_b32 v{z}, 0xffff0000, v{m}")
            a(f"v_and_b32 v{U+3}, 0xffff0000, v{b}")
            a(f"v_fma_f32 v{z}, -v{z}, v{y}, v{U+3}")
            a(f"v_mul_f32 v{dst+9+2*p}, {NEG_LOG2E:#x}, v{z}")
            a(f"v_mul_f32 v{dst+2*p}, {NEG_LOG2E:#x}, v{x}")
            a(f"v_mul_f32 v{dst+2*p+1}, {NEG_LOG2E:#x}, v{y}")

    def param_loads(self, T, voff):
        a = self.a
        for k, sp_ in enumerate((8, 10, 12, 14)):
            for n in range(2):
                a(f"global_load_dwordx2 v[{T+4*k+2*n}:{T+4*k+2*n+1}], v{voff}, s[{sp_}:{sp_+1}] offset:{32*n}")

    def epi_row(self, row, cst, soff, T):
        a = self.a
        r = ACC + row * 8
        for p in range(4):
            a(f"v_pk_fma_f32 v[{r+2*p}:{r+2*p+1}], v[{r+2*p}:{r+2*p+1}], v[{cst+2*p}:{cst+2*p+1}], v[{cst+8+2*p}:{cst+9+2*p}]")
        for i in range(8):
            a(f"v_exp_f32 v{T+i}, v{r+i}")
        for p in range(4):
            a(f"v_pk_fma_f32 v[{T+2*p}:{T+2*p+1}], v[{T+2*p}:{T+2*p+1}], s[58:59], s[58:59]")
        for i in range(8):
            a(f"v_rcp_f32 v{T+i}, v{T+i}")
        for p in range(4):
            a(f"v_pk_mul_f32 v[{T+2*p}:{T+2*p+1}], v[{T+2*p}:{T+2*p+1}], v[{r+2*p}:{r+2*p+1}]")
        for p in range(4):
            a(f"v_cvt_pk_bf16_f32 v{r+p}, v{T+2*p}, v{T+2*p+1}")
        a("s_nop 1")
        a(f"v_permlane16_swap_b32 v{r}, v{r+2}")
        a(f"v_permlane16_swap_b32 v{r+1}, v{r+3}")
        a(f"buffer_store_dwordx4 v[{r}:{r+3}], v{vOut}, s[{sO}:{sO+3}], {soff} offen {self.store_flags}")

    def consumer(self, sp):
        a = self.a
        tag = "s" if sp else "n"
        BSL = 36864 if sp else 12288
        ASL = 16384 if sp else 40960
        AREG = 3 * BSL
        sHM, sHN, sDQ, sDWQ, sOA, sOB, sCNT, sSK0, sSK2, sOM, sOQ = 42, 43, 44, 45, 46, 47, 48, 49, 50, 51, 52
        if self.prio:
            a(f"s_setprio {self.prio}")
        a(f"s_lshr_b32 s{sHM}, s{sWAVE}, 1")
        a(f"s_and_b32 s{sHN}, s{sWAVE}, 1")
        if sp:
            a(f"s_sub_u32 s{sA}, s{sL}, 252")
            a(f"s_lshl_b32 s{sCB}, s{sA}, 1")
            a(f"s_add_u32 s{sCB}, s{sCB}, s{sHM}")
        a("v_lshrrev_b32 v10, 4, v0")
        a("v_and_b32 v11, 15, v0")
        a(f"s_lshl_b32 s3, s{sHN}, 6")
        a(f"s_lshl_b32 s53, s{sCB}, 7")
        a("s_add_u32 s53, s53, s3")
        a("v_lshl_add_u32 v12, v10, 3, s53")
        if sp:
            a("s_add_u32 s54, s3, 1024")
            a("v_lshl_add_u32 v13, v10, 3, s54")
        a("v_lshrrev_b32 v14, 1, v11")
        a("v_xor_b32 v14, v14, v10")
        a("v_lshlrev_b32 v14, 4, v14")
        a("v_lshl_add_u32 v14, v11, 7, v14")
        if sp:
            a(f"v_add_u32 v{bXa}, {AREG}, v14")
            a(f"s_lshl_b32 s3, s{sA}, 1"); a(f"s_add_u32 s3, s3, s{sHM}")
            a("s_cmp_eq_u32 s3, 0"); a(f"s_cselect_b32 s{sSK0}, 1, 0")
            a("s_cmp_eq_u32 s3, 7"); a(f"s_cselect_b32 s{sSK2}, 1, 0")
            a(f"s_mul_i32 s{sOQ}, s3, 1152")
            a(f"s_add_u32 s{sOQ}, s{sOQ}, {63*BG}")
            a(f"s_add_u32 s{sOQ}, s{sOQ}, s54")
            a(f"s_add_u32 s{sOM}, s53, {63*BG}")
            a("s_lshl_b32 s3, s3, 11")
            a(f"s_sub_u32 s{sDQ}, s3, 2048")
            a(f"s_mul_i32 s55, s{sHM}, 12288")
            a(f"s_sub_u32 s{sDWQ}, 24576, s55")
        else:
            a(f"s_lshl_b32 s3, s{sHM}, 14")
            a(f"s_add_u32 s3, s3, {AREG}")
            a(f"v_add_u32 v{bXa}, s3, v14")
            a(f"s_mul_i32 s3, s{sHM}, {7*2048}")
            a(f"s_sub_u32 s{sDQ}, {16*2048}, s3")
            a(f"s_mul_i32 s3, s{sG}, {9*BG}")
            a("s_add_u32 s3, s3, s53")
            a(f"s_lshl_b32 s55, s{sA}, 1"); a(f"s_add_u32 s55, s55, s{sHM}")
            a(f"s_mul_i32 s{sOM}, s55, {BG}")
            a(f"s_add_u32 s{sOM}, s{sOM}, s3")
            a(f"s_mul_i32 s{sOQ}, s55, 1152")
            a(f"s_add_u32 s{sOQ}, s{sOQ}, s3")
            a(f"s_add_u32 s{sOQ}, s{sOQ}, {8*BG}")
            a("s_mov_b32 s55, 0")
        a("v_bfe_u32 v14, v0, 2, 2")
        a("v_lshl_add_u32 v15, v10, 3, v14")
        a("v_lshrrev_b32 v14, 1, v14")
        a("v_and_b32 v16, 1, v10")
        a("v_lshl_or_b32 v14, v16, 1, v14")
        a(f"s_lshl_b32 s3, s{sHN}, 1")
        a("v_xor_b32 v14, s3, v14")
        a("v_lshlrev_b32 v14, 5, v14")
        a("v_lshl_add_u32 v14, v15, 7, v14")
        a("v_and_b32 v15, 3, v0")
        a("v_lshl_add_u32 v14, v15, 3, v14")
        a(f"v_add_u32 v{bW}, s55, v14")
        a("v_mul_u32_u24 v14, 9216, v11")
        a("v_lshlrev_b32 v16, 5, v16")
        a("v_lshrrev_b32 v15, 1, v10")
        a("v_lshlrev_b32 v15, 4, v15")
        a(f"v_add3_u32 v{vOut}, v14, v15, v16")
        a(f"s_mov_b32 s58, {NEG_LOG2E:#x}"); a(f"s_mov_b32 s59, {NEG_LOG2E:#x}")
        self.srds()
        self.stamp(1)
        self.param_loads(XB[0], 12)
        if sp:
            self.param_loads(XB[1], 13)
            a(f"s_lshl_b32 s3, s{sHN}, 8"); a(f"s_add_u32 s3, s3, {STASH + 2048}")
            a("v_lshl_add_u32 v13, v10, 6, s3")
        for i in range(0, 72, 2):
            a(f"v_mov_b64 v[{ACC+i}:{ACC+i+1}], 0")
        a(f"v_mov_b32 v{vXa}, v{bXa}")
        a(f"v_add_u32 v{vXq}, s{sDQ}, v{bXa}")
        a(f"v_mov_b32 v{vW0}, v{bW}")
        a(f"v_xor_b32 v{vW1}, 32, v{bW}")
        if sp:
            a(f"v_add_u32 v{vWq0}, s{sDWQ}, v{vW0}")
            a(f"v_add_u32 v{vWq1}, s{sDWQ}, v{vW1}")
        a("s_waitcnt vmcnt(0)")
        if sp:
            self.params(WB[1], XB[1])
            for j in range(4):
                a(f"ds_write_b128 v13, v[{WB[1]+4*j}:{WB[1]+4*j+3}] offset:{16*j}")
        self.params(CST, XB[0])
        a(f"s_mov_b32 s{sOA}, 0")
        a(f"s_mov_b32 s{sOB}, 0")
        a(f"s_mov_b32 s{sCNT}, 9")
        if sp:
            a("s_waitcnt lgkmcnt(0)")
        self.stamp(2)
        a("s_barrier")
        self.stamp(3)

        def rdW(buf):
            o = []
            for t in range(3):
                for n in range(2):
                    for hf in range(2):
                        r = WB[buf] + (t * 2 + n) * 4 + 2 * hf
                        o.append(f"ds_read_b64_tr_b16 v[{r}:{r+1}], v{[vW0, vW1][n]} offset:{t*4096 + hf*512}")
            return o

        def rdWq():
            o = []
            for t in range(3):
                for n in range(2):
                    for hf in range(2):
                        r = WQ + (t * 2 + n) * 4 + 2 * hf
                        o.append(f"ds_read_b64_tr_b16 v[{r}:{r+1}], v{[vWq0, vWq1][n]} offset:{t*4096 + hf*512}")
            return o

        def rdX(buf):
            return [f"ds_read_b128 {self.q(XB[buf]+4*s)}, v{vXa} offset:{s*2048}" for s in range(8)]

        def rdXq():
            return [f"ds_read_b128 {self.q(XQ+4*j)}, v{vXq} offset:{j*2048}" for j in range(3)]

        def updB():
            o = [f"s_add_u32 s{sOB}, s{sOB}, {BSL}", f"s_cmp_eq_u32 s{sOB}, {3*BSL}", f"s_cselect_b32 s{sOB}, 0, s{sOB}",
                 f"v_add_u32 v{vW0}, s{sOB}, v{bW}", f"v_xor_b32 v{vW1}, 32, v{vW0}"]
            if sp:
                o += [f"v_add_u32 v{vWq0}, s{sDWQ}, v{vW0}", f"v_add_u32 v{vWq1}, s{sDWQ}, v{vW1}"]
            return o

        def updA(newstage):
            if not newstage:
                return [f"v_xor_b32 v{vXa}, 64, v{vXa}", f"v_xor_b32 v{vXq}, 64, v{vXq}"]
            return [f"s_add_u32 s{sOA}, s{sOA}, {ASL}", f"s_cmp_eq_u32 s{sOA}, {3*ASL}", f"s_cselect_b32 s{sOA}, 0, s{sOA}",
                    f"v_add_u32 v{vXa}, s{sOA}, v{bXa}", f"v_add_u32 v{vXq}, s{sDQ}, v{vXa}"]

        for s in rdW(0) + rdX(0) + rdXq() + (rdWq() if sp else []):
            a(s)
        for s in updB() + updA(False):
            a(s)
        a("s_waitcnt lgkmcnt(0)")
        a("s_barrier")
        self.stamp(4)

        def step(buf, uid, tail):
            nb = 1 - buf
            mf = []
            wq = WQ if sp else WB[buf]

            def W(base, t, n):
                return self.q(base + (t * 2 + n) * 4)
            pre = {}
            post = {}
            if sp:
                order = [(1, 0), (1, 1), (0, 0), (0, 1), (2, 0), (2, 1)]
                pre[2] = [f"s_cmp_lg_u32 s{sSK0}, 0", f"s_cbranch_scc1 L_sk0_{uid}"]
                pre[4] = [f"L_sk0_{uid}:", f"s_cmp_lg_u32 s{sSK2}, 0", f"s_cbranch_scc1 L_sk2_{uid}"]
                pre[6] = [f"L_sk2_{uid}:"]
            else:
                order = [(t, n) for n in range(2) for t in range(3)]
            for (t, n) in order:
                mf.append(f"v_mfma_f32_16x16x32_bf16 {self.acc(8, n)}, {W(wq, t, n)}, {self.q(XQ+4*t)}, {self.acc(8, n)}")
            for s in range(8):
                for n in range(2):
                    for t in range(3):
                        si = s + t - 1
                        if 0 <= si < 8:
                            mf.append(f"v_mfma_f32_16x16x32_bf16 {self.acc(s, n)}, {W(WB[buf], t, n)}, {self.q(XB[buf]+4*si)}, {self.acc(s, n)}")
            assert len(mf) == 50
            slots = [[] for _ in range(50)]
            early = rdW(nb) + rdX(nb)
            late = rdXq() + (rdWq() if sp else [])
            if sp:
                seq = list(range(6, 50))
                fill = early + late
            else:
                seq = list(range(0, 50))
                fill = early[:6] + late + early[6:]
            for k, s in enumerate(fill):
                slots[seq[k]].append(s)
            pos = seq[len(fill)]
            upd = updB() + updA(buf == 0) + tail
            per = 1 if len(upd) <= 49 - pos else 2
            for k, s in enumerate(upd):
                slots[pos + k // per].append(s)
            for m in range(50):
                for s in pre.get(m, []):
                    if s.endswith(":"):
                        self.lab(s[:-1])
                    else:
                        a(s)
                if m == 49:
                    if self.diag and buf == 1:
                        a("s_memtime s[90:91]")
                    a("s_waitcnt lgkmcnt(0)")
                    if self.diag and buf == 1:
                        a(f"s_sub_u32 m0, 24, s{sCNT}")
                        a("s_nop 0")
                        a("v_writelane_b32 v15, s90, m0")
                        a(f"s_cmp_lg_u32 s{sCNT}, 0")
                a(mf[m])
                for s in slots[m]:
                    a(s)

        self.L.append(".p2align 6")
        self.lab(f"L_cloop_{tag}")
        step(0, tag + "0", [])
        a("s_barrier")
        step(1, tag + "1", [f"s_sub_u32 s{sCNT}, s{sCNT}, 1", f"s_cmp_lg_u32 s{sCNT}, 0"])
        a("s_barrier")
        a(f"s_cbranch_scc1 L_cloop_{tag}")
        self.stamp(5)
        T = XB[0]
        if sp:
            for j in range(4):
                a(f"ds_read_b128 v[{WB[1]+4*j}:{WB[1]+4*j+3}], v13 offset:{16*j}")
            a("s_waitcnt lgkmcnt(0)")
        a("s_nop 4")
        self.epi_row(8, WB[1] if sp else CST, f"s{sOQ}", T)
        for s in range(8):
            self.epi_row(s, CST, f"s{sOM}", T + 8 * ((s + 1) % 2))
            if s < 7:
                a(f"s_add_u32 s{sOM}, s{sOM}, 1152")
        self.stamp(6)
        if self.diag:
            a("s_waitcnt vmcnt(0)")
        self.stamp(7)
        self.diag_out(8)
        a("s_endpgm")

    def build(self):
        L = self.L
        L.append(HEADER + "; @launch grid=(256,1,1) block=(512,1,1) lds=163840")
        L.append('.amdgcn_target "amdgcn-amd-amdhsa--gfx950"')
        L.append(".text")
        L.append(f".globl {NAME}")
        L.append(".p2align 8")
        L.append(f".type {NAME},@function")
        self.lab(NAME)
        self.entry()
        self.loader(False)
        self.lab("L_cons_n")
        self.consumer(False)
        self.lab("L_special")
        self.a(f"s_cmp_lt_u32 s{sWAVE}, 4")
        self.a("s_cbranch_scc1 L_cons_s")
        self.loader(True)
        self.lab("L_cons_s")
        self.consumer(True)
        self.lab("L_end")
        self.a("s_endpgm")
        L.append('.section .rodata,"a"')
        L.append(".p2align 6")
        L.append(f".amdhsa_kernel {NAME}")
        L.append("  .amdhsa_next_free_vgpr 256\n  .amdhsa_next_free_sgpr 102\n  .amdhsa_accum_offset 256\n"
                 "  .amdhsa_group_segment_fixed_size 0\n  .amdhsa_kernarg_size 72\n  .amdhsa_user_sgpr_count 2\n"
                 "  .amdhsa_user_sgpr_kernarg_segment_ptr 1\n  .amdhsa_system_sgpr_workgroup_id_x 1\n"
                 "  .amdhsa_float_denorm_mode_32 3")
        L.append(".end_amdhsa_kernel")
        return "\n".join(L) + "\n"


if __name__ == "__main__":
    import argparse
    ap = argparse.ArgumentParser()
    ap.add_argument("-o", default="standalone__batchnorm__sampling.s")
    ap.add_argument("--diag", action="store_true")
    ap.add_argument("--store", default="")
    ap.add_argument("--prio", type=int, default=0)
    ap.add_argument("--dfx", default="")
    ap.add_argument("--dfw", default="")
    ap.add_argument("--phases", type=int, default=1)
    ap.add_argument("--pro", type=int, default=0)
    o = ap.parse_args()
    open(o.o, "w").write(Gen(o.diag, o.store, o.prio, o.dfx, o.dfw, o.phases, o.pro).build())
```

```python
import sys

NAME = "standalone__batchnorm__sampling_kernel"
HEADER = """; Kernarg layout for this problem (72 bytes, ptrs only, base s[0:1]):
"""
XBYTES = 1024 * 8 * 576 * 2
WBYTES = 3 * 576 * 576 * 2
BG = 16 * 9216
TAP = 576 * 1152
NEG_LOG2E = 0xbfb8aa3b
OOB = 0x40000000
STASH = 159744

sX, sW, sO = 20, 24, 28
sWAVE, sL, sRHO, sCB, sG, sA = 36, 37, 38, 39, 40, 41
vXa, vXq, vW0, vW1, vWq0, vWq1, bXa, bW, vOut = 1, 2, 3, 4, 5, 6, 7, 8, 9
ACC = 16
XB = [88, 120]
XQ = 152
WB = [164, 188]
WQ = 212
CST = 236


class Gen:
    def __init__(self, diag=False, store_flags="", prio=0, dma_flags_x="", dma_flags_w="", phases=1, pro=0, padend=0, padb=0):
        self.padend = padend
        self.padb = padb
        self.phases = phases
        self.pro = pro
        self.L = []
        self.diag = diag
        self.store_flags = store_flags
        self.prio = prio
        self.dfx = dma_flags_x
        self.dfw = dma_flags_w

    def a(self, s):
        self.L.append("    " + s)

    def lab(self, s):
        self.L.append(s + ":")

    def acc(self, row, n):
        r = ACC + (row * 2 + n) * 4
        return f"v[{r}:{r+3}]"

    @staticmethod
    def q(r):
        return f"v[{r}:{r+3}]"

    def stamp(self, k):
        if self.diag:
            self.a(f"s_memtime s[{64+2*k}:{65+2*k}]")

    def diag_out(self, nst):
        if not self.diag:
            return
        a = self.a
        a("s_memrealtime s[62:63]")
        a("s_waitcnt lgkmcnt(0)")
        a("s_mov_b32 s32, s18"); a("s_mov_b32 s33, s19"); a("s_mov_b32 s34, 0x100000"); a("s_mov_b32 s35, 0x20000")
        a("v_mov_b32 v10, v15")
        for k in range(nst):
            a(f"v_writelane_b32 v10, s{64+2*k}, {k}")
        a("v_writelane_b32 v10, s60, 30")
        a("v_writelane_b32 v10, s62, 31")
        a(f"s_lshl_b32 s3, s2, 3"); a(f"s_add_u32 s3, s3, s{sWAVE}"); a("s_lshl_b32 s3, s3, 7")
        a("v_mbcnt_lo_u32_b32 v11, -1, 0"); a("v_mbcnt_hi_u32_b32 v11, -1, v11")
        a("v_lshlrev_b32 v11, 2, v11")
        a("s_mov_b64 exec, 0xffffffff")
        a("buffer_store_dword v10, v11, s[32:35], s3 offen")

    def spin(self, ticks, uid):
        a = self.a
        self.lab(f"L_spin_{uid}")
        a("s_memrealtime s[62:63]")
        a("s_waitcnt lgkmcnt(0)")
        a("s_sub_u32 s3, s62, s60")
        a(f"s_cmp_lt_u32 s3, {ticks}")
        a(f"s_cbranch_scc1 L_spin_{uid}")

    def entry(self):
        a = self.a
        if self.diag or self.padend or self.padb:
            a("s_memrealtime s[60:61]")
        self.stamp(0)
        a("s_cmp_ge_u32 s2, 256")
        a("s_cbranch_scc1 L_end")
        a("s_load_dwordx4 s[4:7], s[0:1], 0")
        a("s_load_dwordx4 s[8:11], s[0:1], 16")
        a("s_load_dwordx4 s[12:15], s[0:1], 32")
        a("s_load_dwordx2 s[16:17], s[0:1], 48")
        if self.diag:
            a("s_load_dwordx2 s[18:19], s[0:1], 64")
        a("v_lshrrev_b32 v1, 6, v0")
        a("v_and_b32 v0, 63, v0")
        a(f"s_and_b32 s{sL}, s2, 7")
        a(f"v_readfirstlane_b32 s{sWAVE}, v1")
        a(f"s_lshl_b32 s{sL}, s{sL}, 5")
        a("s_lshr_b32 s3, s2, 3")
        a(f"s_add_u32 s{sL}, s{sL}, s3")
        a(f"s_mul_i32 s{sRHO}, s{sL}, 7282")
        a(f"s_lshr_b32 s{sRHO}, s{sRHO}, 16")
        a(f"s_mul_i32 s3, s{sRHO}, 9")
        a(f"s_sub_u32 s{sCB}, s{sL}, s3")
        a(f"s_lshr_b32 s{sG}, s{sRHO}, 2")
        a(f"s_and_b32 s{sA}, s{sRHO}, 3")
        a(f"s_mov_b32 s{sX+2}, {XBYTES}"); a(f"s_mov_b32 s{sX+3}, 0x20000")
        a(f"s_mov_b32 s{sW+2}, {WBYTES}"); a(f"s_mov_b32 s{sW+3}, 0x20000")
        a(f"s_mov_b32 s{sO+2}, {XBYTES}"); a(f"s_mov_b32 s{sO+3}, 0x20000")
        a(f"s_cmp_ge_u32 s{sL}, 252")
        a("s_cbranch_scc1 L_special")
        a(f"s_cmp_lt_u32 s{sWAVE}, 4")
        a("s_cbranch_scc1 L_cons_n")

    def srds(self):
        a = self.a
        a("s_waitcnt lgkmcnt(0)")
        a(f"s_mov_b32 s{sX}, s4"); a(f"s_mov_b32 s{sX+1}, s5")
        a(f"s_mov_b32 s{sW}, s6"); a(f"s_mov_b32 s{sW+1}, s7")
        a(f"s_mov_b32 s{sO}, s16"); a(f"s_mov_b32 s{sO+1}, s17")

    def loader(self, sp):
        a = self.a
        tag = "s" if sp else "n"
        nB, nA = (9, 2) if sp else (3, 5)
        BSL = 36864 if sp else 12288
        ASL = 16384 if sp else 40960
        AREG = 3 * BSL
        sLW, sHB, sRP = 42, 43, 44
        sROW = 45
        sBO = 45 + 4
        sLA, sLB, sOA, sOB, sCNT = 80, 81, 82, 83, 84
        sT1, sT2 = 55, 56
        vA, vA16, vA18, vB = 2, 3, 4, 5
        a(f"s_and_b32 s{sLW}, s{sWAVE}, 3")
        a(f"s_and_b32 s{sHB}, s{sWAVE}, 1")
        a(f"s_bfe_u32 s{sRP}, s{sWAVE}, 0x10001")
        a("v_lshrrev_b32 v6, 3, v0")
        a("v_and_b32 v7, 7, v0")
        a("v_bfe_u32 v8, v0, 4, 1")
        a(f"s_lshl_b32 s3, s{sHB}, 1")
        a("v_or_b32 v8, s3, v8")
        a("v_lshlrev_b32 v8, 1, v8")
        a("v_xor_b32 v8, v8, v7")
        a("v_lshlrev_b32 v8, 4, v8")
        a("v_mul_u32_u24 v9, 1152, v6")
        a(f"s_mul_i32 s3, s{sLW}, {8*1152}")
        if not sp:
            a(f"s_lshl_b32 s46, s{sCB}, 7")
            a("s_add_u32 s3, s3, s46")
        a(f"v_add3_u32 v{vB}, v8, v9, s3")
        a(f"s_lshl_b32 s3, s{sHB}, 3")
        a("v_add_u32 v6, s3, v6")
        a("v_lshrrev_b32 v8, 1, v6")
        a("v_xor_b32 v8, v8, v7")
        a("v_lshlrev_b32 v8, 4, v8")
        a("v_mul_u32_u24 v9, 9216, v6")
        a(f"v_add_u32 v{vA}, v8, v9")
        a(f"s_mul_i32 s3, s{sRP}, 1152")
        if sp:
            a(f"s_sub_u32 s{sA}, s{sL}, 252")
            for k, r0 in enumerate((0, 2, 4, 6)):
                a(f"s_add_u32 s{sROW+k}, s3, {63*BG + r0*1152}")
            a(f"s_lshl_b32 s3, s{sA}, 8")
            for u in range(3):
                for t in range(3):
                    if u < 2:
                        a(f"s_add_u32 s{sBO+3*u+t}, s3, {t*TAP + u*128}")
                    else:
                        a(f"s_mov_b32 s{sBO+3*u+t}, {t*TAP + 1024}")
        else:
            a(f"s_mul_i32 s57, s{sG}, {9*BG}")
            a("s_add_u32 s3, s3, s57")
            a(f"s_mul_i32 s57, s{sA}, {2*BG}")
            a("s_add_u32 s57, s57, s3")
            for k in range(8):
                r0 = 2 * k
                off = r0 * 1152 if r0 < 8 else BG + (r0 - 8) * 1152
                a(f"s_add_u32 s{sROW+k}, s57, {off}")
            a(f"s_mul_i32 s57, s{sA}, 2304")
            a("s_add_u32 s57, s57, s3")
            a(f"s_add_u32 s{sROW+8}, s57, {8*BG - 1152}")
            a(f"s_add_u32 s{sROW+9}, s57, {8*BG + 1152}")
            a(f"s_mov_b32 s{sT1}, {TAP}")
            a(f"s_mov_b32 s{sT2}, {2*TAP}")
            a(f"s_lshl_b32 s3, s{sA}, 1"); a(f"s_add_u32 s3, s3, s{sRP}")
            a("s_cmp_eq_u32 s3, 0")
            a(f"s_cselect_b32 s57, {OOB}, 0")
            a(f"v_add_u32 v{vA16}, s57, v{vA}")
            a("s_cmp_eq_u32 s3, 7")
            a(f"s_cselect_b32 s57, {OOB}, 0")
            a(f"v_add_u32 v{vA18}, s57, v{vA}")
        a(f"s_lshl_b32 s{sLB}, s{sLW}, 10")
        a(f"s_lshl_b32 s3, s{sRP}, 11"); a(f"s_lshl_b32 s87, s{sHB}, 10")
        a("s_add_u32 s3, s3, s87"); a(f"s_add_u32 s{sLA}, s3, {AREG}")
        sKA, sKB = 88, 89
        P = self.phases
        if P > 1:
            a(f"s_add_u32 s3, s{sCB}, s{sRHO}")
            a(f"s_mul_i32 s87, s3, {(65536 + P - 1)//P}")
            a("s_lshr_b32 s87, s87, 16")
            a(f"s_mul_i32 s87, s87, {P}")
            a("s_sub_u32 s3, s3, s87")
            mul = {2: 4, 3: 3, 4: 2, 5: 2, 9: 1}[P]
            a(f"s_mul_i32 s{sKA}, s3, {mul}")
            a(f"s_lshl_b32 s{sKB}, s{sKA}, 1")
            a(f"s_lshl_b32 s3, s{sKA}, 7")
            a(f"v_add_u32 v{vA}, s3, v{vA}")
            if not sp:
                a(f"v_add_u32 v{vA16}, s3, v{vA16}")
                a(f"v_add_u32 v{vA18}, s3, v{vA18}")
            a(f"s_mul_i32 s3, s{sKB}, {32*1152}")
            a(f"v_add_u32 v{vB}, s3, v{vB}")
            a(f"s_mov_b32 s93, {32*1152}")
            a(f"s_movk_i32 s94, 128")
        self.srds()
        self.stamp(1)

        def issueB(base, static_off=0):
            for e in range(nB):
                if sp:
                    u, t = divmod(e, 3)
                    a(f"s_add_u32 m0, s{base}, {static_off + u*12288 + t*4096}")
                    so = f"s{sBO+e}"
                else:
                    a(f"s_add_u32 m0, s{base}, {static_off + e*4096}")
                    so = ["0", f"s{sT1}", f"s{sT2}"][e]
                a("s_nop 0")
                a(f"buffer_load_dwordx4 v{vB}, s[{sW}:{sW+3}], {so} offen {self.dfw} lds")
            if P > 1:
                a(f"s_add_u32 s{sKB}, s{sKB}, 1")
                a(f"s_cmp_eq_u32 s{sKB}, 18")
                a(f"s_cselect_b32 s3, {(-17*32*1152) & 0xffffffff:#x}, s93")
                a(f"s_cselect_b32 s{sKB}, 0, s{sKB}")
                a(f"v_add_u32 v{vB}, s3, v{vB}")
            else:
                a(f"v_add_u32 v{vB}, {32*1152}, v{vB}")

        def issueA(h, base, static_off=0):
            for j in range(nA):
                k = h * nA + j
                r0 = 2 * k
                a(f"s_add_u32 m0, s{base}, {static_off + r0*2048}")
                va = vA
                if not sp and r0 == 16: va = vA16
                if not sp and r0 == 18: va = vA18
                a("s_nop 0")
                a(f"buffer_load_dwordx4 v{va}, s[{sX}:{sX+3}], s{sROW+k} offen {self.dfx} lds")
            if h == 1:
                d = "128"
                if P > 1:
                    a(f"s_add_u32 s{sKA}, s{sKA}, 1")
                    a(f"s_cmp_eq_u32 s{sKA}, 9")
                    a(f"s_cselect_b32 s3, {(-8*128) & 0xffffffff:#x}, s94")
                    a(f"s_cselect_b32 s{sKA}, 0, s{sKA}")
                    d = "s3"
                a(f"v_add_u32 v{vA}, {d}, v{vA}")
                if not sp:
                    a(f"v_add_u32 v{vA16}, {d}, v{vA16}")
                    a(f"v_add_u32 v{vA18}, {d}, v{vA18}")

        if self.pro == 0:
            issueB(sLB, 0)
            issueA(0, sLA, 0); issueA(1, sLA, 0)
            issueB(sLB, BSL)
            issueA(0, sLA, ASL); issueA(1, sLA, ASL)
            issueB(sLB, 2 * BSL)
            issueA(0, sLA, 2 * ASL)
            self.stamp(2)
            a(f"s_waitcnt vmcnt({2*nB+3*nA})")
            self.stamp(3)
            a("s_barrier")
            a(f"s_waitcnt vmcnt({nB+3*nA})")
            a("s_barrier")
        elif self.pro == 1:
            issueB(sLB, 0)
            issueA(0, sLA, 0); issueA(1, sLA, 0)
            issueB(sLB, BSL)
            issueA(0, sLA, ASL)
            self.stamp(2)
            a(f"s_waitcnt vmcnt({nB+nA})")
            self.stamp(3)
            a("s_barrier")
            issueA(1, sLA, ASL)
            a(f"s_waitcnt vmcnt({2*nA})")
            a("s_barrier")
            issueB(sLB, 2 * BSL)
            issueA(0, sLA, 2 * ASL)
        elif self.pro == 2:
            issueB(sLB, 0)
            issueA(0, sLA, 0); issueA(1, sLA, 0)
            issueB(sLB, BSL)
            issueA(0, sLA, ASL); issueA(1, sLA, ASL)
            self.stamp(2)
            a(f"s_waitcnt vmcnt({nB+2*nA})")
            self.stamp(3)
            a("s_barrier")
            issueB(sLB, 2 * BSL)
            a(f"s_waitcnt vmcnt({2*nA+nB})")
            a("s_barrier")
            issueA(0, sLA, 2 * ASL)
        a(f"s_mov_b32 s{sOB}, s{sLB}")
        a(f"s_add_u32 s{sOA}, s{sLA}, {2*ASL}")
        a(f"s_add_u32 s85, s{sLB}, {3*BSL}")
        a(f"s_add_u32 s86, s{sLA}, {3*ASL}")

        def advB():
            a(f"s_add_u32 s{sOB}, s{sOB}, {BSL}")
            a(f"s_cmp_eq_u32 s{sOB}, s85")
            a(f"s_cselect_b32 s{sOB}, s{sLB}, s{sOB}")

        def advA():
            a(f"s_add_u32 s{sOA}, s{sOA}, {ASL}")
            a(f"s_cmp_eq_u32 s{sOA}, s86")
            a(f"s_cselect_b32 s{sOA}, s{sLA}, s{sOA}")

        a(f"s_mov_b32 s{sCNT}, 6")
        self.lab(f"L_lloop_{tag}")
        issueB(sOB); advB()
        issueA(1, sOA); advA()
        a(f"s_waitcnt vmcnt({nB+2*nA})")
        a("s_barrier")
        issueB(sOB); advB()
        issueA(0, sOA)
        a(f"s_sub_u32 s{sCNT}, s{sCNT}, 1")
        a(f"s_cmp_lg_u32 s{sCNT}, 0")
        a(f"s_waitcnt vmcnt({nB+2*nA})")
        a("s_barrier")
        a(f"s_cbranch_scc1 L_lloop_{tag}")
        issueB(sOB); advB()
        issueA(1, sOA)
        a(f"s_waitcnt vmcnt({nB+2*nA})")
        a("s_barrier")
        issueB(sOB); advB()
        a(f"s_waitcnt vmcnt({nB+nA})")
        a("s_barrier")
        issueB(sOB)
        a(f"s_waitcnt vmcnt({nB})")
        a("s_barrier")
        a("s_waitcnt vmcnt(0)")
        self.stamp(4)
        a("s_barrier")
        self.diag_out(5)
        a("s_endpgm")

    def params(self, dst, T):
        a = self.a
        U = T + 16
        for p in range(4):
            m, v, g, b = T + p, T + 4 + p, T + 8 + p, T + 12 + p
            x, y, z = U, U + 1, U + 2

            def rnd():
                a(f"v_cvt_pk_bf16_f32 v{z}, v{x}, v{y}")
                a(f"v_lshlrev_b32 v{x}, 16, v{z}")
                a(f"v_and_b32 v{y}, 0xffff0000, v{z}")
            a(f"v_lshlrev_b32 v{x}, 16, v{v}")
            a(f"v_and_b32 v{y}, 0xffff0000, v{v}")
            a(f"v_add_f32 v{x}, 0x3727c5ac, v{x}")
            a(f"v_add_f32 v{y}, 0x3727c5ac, v{y}")
            rnd()
            a(f"v_sqrt_f32 v{x}, v{x}")
            a(f"v_sqrt_f32 v{y}, v{y}")
            a("s_nop 0")
            rnd()
            a(f"v_rcp_f32 v{x}, v{x}")
            a(f"v_rcp_f32 v{y}, v{y}")
            a("s_nop 0")
            rnd()
            a(f"v_lshlrev_b32 v{z}, 16, v{g}")
            a(f"v_mul_f32 v{x}, v{x}, v{z}")
            a(f"v_and_b32 v{z}, 0xffff0000, v{g}")
            a(f"v_mul_f32 v{y}, v{y}, v{z}")
            rnd()
            a(f"v_lshlrev_b32 v{z}, 16, v{m}")
            a(f"v_lshlrev_b32 v{U+3}, 16, v{b}")
            a(f"v_fma_f32 v{z}, -v{z}, v{x}, v{U+3}")
            a(f"v_mul_f32 v{dst+8+2*p}, {NEG_LOG2E:#x}, v{z}")
            a(f"v_and_b32 v{z}, 0xffff0000, v{m}")
            a(f"v_and_b32 v{U+3}, 0xffff0000, v{b}")
            a(f"v_fma_f32 v{z}, -v{z}, v{y}, v{U+3}")
            a(f"v_mul_f32 v{dst+9+2*p}, {NEG_LOG2E:#x}, v{z}")
            a(f"v_mul_f32 v{dst+2*p}, {NEG_LOG2E:#x}, v{x}")
            a(f"v_mul_f32 v{dst+2*p+1}, {NEG_LOG2E:#x}, v{y}")

    def param_loads(self, T, voff):
        a = self.a
        for k, sp_ in enumerate((8, 10, 12, 14)):
            for n in range(2):
                a(f"global_load_dwordx2 v[{T+4*k+2*n}:{T+4*k+2*n+1}], v{voff}, s[{sp_}:{sp_+1}] offset:{32*n}")

    def epi_row(self, row, cst, soff, T):
        a = self.a
        r = ACC + row * 8
        for p in range(4):
            a(f"v_pk_fma_f32 v[{r+2*p}:{r+2*p+1}], v[{r+2*p}:{r+2*p+1}], v[{cst+2*p}:{cst+2*p+1}], v[{cst+8+2*p}:{cst+9+2*p}]")
        for i in range(8):
            a(f"v_exp_f32 v{T+i}, v{r+i}")
        for p in range(4):
            a(f"v_pk_fma_f32 v[{T+2*p}:{T+2*p+1}], v[{T+2*p}:{T+2*p+1}], s[58:59], s[58:59]")
        for i in range(8):
            a(f"v_rcp_f32 v{T+i}, v{T+i}")
        for p in range(4):
            a(f"v_pk_mul_f32 v[{T+2*p}:{T+2*p+1}], v[{T+2*p}:{T+2*p+1}], v[{r+2*p}:{r+2*p+1}]")
        for p in range(4):
            a(f"v_cvt_pk_bf16_f32 v{r+p}, v{T+2*p}, v{T+2*p+1}")
        a("s_nop 1")
        a(f"v_permlane16_swap_b32 v{r}, v{r+2}")
        a(f"v_permlane16_swap_b32 v{r+1}, v{r+3}")
        a(f"buffer_store_dwordx4 v[{r}:{r+3}], v{vOut}, s[{sO}:{sO+3}], {soff} offen {self.store_flags}")

    def consumer(self, sp):
        a = self.a
        tag = "s" if sp else "n"
        BSL = 36864 if sp else 12288
        ASL = 16384 if sp else 40960
        AREG = 3 * BSL
        sHM, sHN, sDQ, sDWQ, sOA, sOB, sCNT, sSK0, sSK2, sOM, sOQ = 42, 43, 44, 45, 46, 47, 48, 49, 50, 51, 52
        if self.prio:
            a(f"s_setprio {self.prio}")
        a(f"s_lshr_b32 s{sHM}, s{sWAVE}, 1")
        a(f"s_and_b32 s{sHN}, s{sWAVE}, 1")
        if sp:
            a(f"s_sub_u32 s{sA}, s{sL}, 252")
            a(f"s_lshl_b32 s{sCB}, s{sA}, 1")
            a(f"s_add_u32 s{sCB}, s{sCB}, s{sHM}")
        a("v_lshrrev_b32 v10, 4, v0")
        a("v_and_b32 v11, 15, v0")
        a(f"s_lshl_b32 s3, s{sHN}, 6")
        a(f"s_lshl_b32 s53, s{sCB}, 7")
        a("s_add_u32 s53, s53, s3")
        a("v_lshl_add_u32 v12, v10, 3, s53")
        if sp:
            a("s_add_u32 s54, s3, 1024")
            a("v_lshl_add_u32 v13, v10, 3, s54")
        a("v_lshrrev_b32 v14, 1, v11")
        a("v_xor_b32 v14, v14, v10")
        a("v_lshlrev_b32 v14, 4, v14")
        a("v_lshl_add_u32 v14, v11, 7, v14")
        if sp:
            a(f"v_add_u32 v{bXa}, {AREG}, v14")
            a(f"s_lshl_b32 s3, s{sA}, 1"); a(f"s_add_u32 s3, s3, s{sHM}")
            a("s_cmp_eq_u32 s3, 0"); a(f"s_cselect_b32 s{sSK0}, 1, 0")
            a("s_cmp_eq_u32 s3, 7"); a(f"s_cselect_b32 s{sSK2}, 1, 0")
            a(f"s_mul_i32 s{sOQ}, s3, 1152")
            a(f"s_add_u32 s{sOQ}, s{sOQ}, {63*BG}")
            a(f"s_add_u32 s{sOQ}, s{sOQ}, s54")
            a(f"s_add_u32 s{sOM}, s53, {63*BG}")
            a("s_lshl_b32 s3, s3, 11")
            a(f"s_sub_u32 s{sDQ}, s3, 2048")
            a(f"s_mul_i32 s55, s{sHM}, 12288")
            a(f"s_sub_u32 s{sDWQ}, 24576, s55")
        else:
            a(f"s_lshl_b32 s3, s{sHM}, 14")
            a(f"s_add_u32 s3, s3, {AREG}")
            a(f"v_add_u32 v{bXa}, s3, v14")
            a(f"s_mul_i32 s3, s{sHM}, {7*2048}")
            a(f"s_sub_u32 s{sDQ}, {16*2048}, s3")
            a(f"s_mul_i32 s3, s{sG}, {9*BG}")
            a("s_add_u32 s3, s3, s53")
            a(f"s_lshl_b32 s55, s{sA}, 1"); a(f"s_add_u32 s55, s55, s{sHM}")
            a(f"s_mul_i32 s{sOM}, s55, {BG}")
            a(f"s_add_u32 s{sOM}, s{sOM}, s3")
            a(f"s_mul_i32 s{sOQ}, s55, 1152")
            a(f"s_add_u32 s{sOQ}, s{sOQ}, s3")
            a(f"s_add_u32 s{sOQ}, s{sOQ}, {8*BG}")
            a("s_mov_b32 s55, 0")
        a("v_bfe_u32 v14, v0, 2, 2")
        a("v_lshl_add_u32 v15, v10, 3, v14")
        a("v_lshrrev_b32 v14, 1, v14")
        a("v_and_b32 v16, 1, v10")
        a("v_lshl_or_b32 v14, v16, 1, v14")
        a(f"s_lshl_b32 s3, s{sHN}, 1")
        a("v_xor_b32 v14, s3, v14")
        a("v_lshlrev_b32 v14, 5, v14")
        a("v_lshl_add_u32 v14, v15, 7, v14")
        a("v_and_b32 v15, 3, v0")
        a("v_lshl_add_u32 v14, v15, 3, v14")
        a(f"v_add_u32 v{bW}, s55, v14")
        a("v_mul_u32_u24 v14, 9216, v11")
        a("v_lshlrev_b32 v16, 5, v16")
        a("v_lshrrev_b32 v15, 1, v10")
        a("v_lshlrev_b32 v15, 4, v15")
        a(f"v_add3_u32 v{vOut}, v14, v15, v16")
        a(f"s_mov_b32 s58, {NEG_LOG2E:#x}"); a(f"s_mov_b32 s59, {NEG_LOG2E:#x}")
        self.srds()
        self.stamp(1)
        self.param_loads(XB[0], 12)
        if sp:
            self.param_loads(XB[1], 13)
            a(f"s_lshl_b32 s3, s{sHN}, 8"); a(f"s_add_u32 s3, s3, {STASH + 2048}")
            a("v_lshl_add_u32 v13, v10, 6, s3")
        for i in range(0, 72, 2):
            a(f"v_mov_b64 v[{ACC+i}:{ACC+i+1}], 0")
        a(f"v_mov_b32 v{vXa}, v{bXa}")
        a(f"v_add_u32 v{vXq}, s{sDQ}, v{bXa}")
        a(f"v_mov_b32 v{vW0}, v{bW}")
        a(f"v_xor_b32 v{vW1}, 32, v{bW}")
        if sp:
            a(f"v_add_u32 v{vWq0}, s{sDWQ}, v{vW0}")
            a(f"v_add_u32 v{vWq1}, s{sDWQ}, v{vW1}")
        a("s_waitcnt vmcnt(0)")
        if sp:
            self.params(WB[1], XB[1])
            for j in range(4):
                a(f"ds_write_b128 v13, v[{WB[1]+4*j}:{WB[1]+4*j+3}] offset:{16*j}")
        self.params(CST, XB[0])
        a(f"s_mov_b32 s{sOA}, 0")
        a(f"s_mov_b32 s{sOB}, 0")
        a(f"s_mov_b32 s{sCNT}, 9")
        if sp:
            a("s_waitcnt lgkmcnt(0)")
        self.stamp(2)
        if self.padb:
            self.spin(self.padb, "b" + tag)
        a("s_barrier")
        self.stamp(3)

        def rdW(buf):
            o = []
            for t in range(3):
                for n in range(2):
                    for hf in range(2):
                        r = WB[buf] + (t * 2 + n) * 4 + 2 * hf
                        o.append(f"ds_read_b64_tr_b16 v[{r}:{r+1}], v{[vW0, vW1][n]} offset:{t*4096 + hf*512}")
            return o

        def rdWq():
            o = []
            for t in range(3):
                for n in range(2):
                    for hf in range(2):
                        r = WQ + (t * 2 + n) * 4 + 2 * hf
                        o.append(f"ds_read_b64_tr_b16 v[{r}:{r+1}], v{[vWq0, vWq1][n]} offset:{t*4096 + hf*512}")
            return o

        def rdX(buf):
            return [f"ds_read_b128 {self.q(XB[buf]+4*s)}, v{vXa} offset:{s*2048}" for s in range(8)]

        def rdXq():
            return [f"ds_read_b128 {self.q(XQ+4*j)}, v{vXq} offset:{j*2048}" for j in range(3)]

        def updB():
            o = [f"s_add_u32 s{sOB}, s{sOB}, {BSL}", f"s_cmp_eq_u32 s{sOB}, {3*BSL}", f"s_cselect_b32 s{sOB}, 0, s{sOB}",
                 f"v_add_u32 v{vW0}, s{sOB}, v{bW}", f"v_xor_b32 v{vW1}, 32, v{vW0}"]
            if sp:
                o += [f"v_add_u32 v{vWq0}, s{sDWQ}, v{vW0}", f"v_add_u32 v{vWq1}, s{sDWQ}, v{vW1}"]
            return o

        def updA(newstage):
            if not newstage:
                return [f"v_xor_b32 v{vXa}, 64, v{vXa}", f"v_xor_b32 v{vXq}, 64, v{vXq}"]
            return [f"s_add_u32 s{sOA}, s{sOA}, {ASL}", f"s_cmp_eq_u32 s{sOA}, {3*ASL}", f"s_cselect_b32 s{sOA}, 0, s{sOA}",
                    f"v_add_u32 v{vXa}, s{sOA}, v{bXa}", f"v_add_u32 v{vXq}, s{sDQ}, v{vXa}"]

        for s in rdW(0) + rdX(0) + rdXq() + (rdWq() if sp else []):
            a(s)
        for s in updB() + updA(False):
            a(s)
        a("s_waitcnt lgkmcnt(0)")
        a("s_barrier")
        self.stamp(4)

        def step(buf, uid, tail):
            nb = 1 - buf
            mf = []
            wq = WQ if sp else WB[buf]

            def W(base, t, n):
                return self.q(base + (t * 2 + n) * 4)
            pre = {}
            post = {}
            if sp:
                order = [(1, 0), (1, 1), (0, 0), (0, 1), (2, 0), (2, 1)]
                pre[2] = [f"s_cmp_lg_u32 s{sSK0}, 0", f"s_cbranch_scc1 L_sk0_{uid}"]
                pre[4] = [f"L_sk0_{uid}:", f"s_cmp_lg_u32 s{sSK2}, 0", f"s_cbranch_scc1 L_sk2_{uid}"]
                pre[6] = [f"L_sk2_{uid}:"]
            else:
                order = [(t, n) for n in range(2) for t in range(3)]
            for (t, n) in order:
                mf.append(f"v_mfma_f32_16x16x32_bf16 {self.acc(8, n)}, {W(wq, t, n)}, {self.q(XQ+4*t)}, {self.acc(8, n)}")
            for s in range(8):
                for n in range(2):
                    for t in range(3):
                        si = s + t - 1
                        if 0 <= si < 8:
                            mf.append(f"v_mfma_f32_16x16x32_bf16 {self.acc(s, n)}, {W(WB[buf], t, n)}, {self.q(XB[buf]+4*si)}, {self.acc(s, n)}")
            assert len(mf) == 50
            slots = [[] for _ in range(50)]
            early = rdW(nb) + rdX(nb)
            late = rdXq() + (rdWq() if sp else [])
            if sp:
                seq = list(range(6, 50))
                fill = early + late
            else:
                seq = list(range(0, 50))
                fill = early[:6] + late + early[6:]
            for k, s in enumerate(fill):
                slots[seq[k]].append(s)
            pos = seq[len(fill)]
            upd = updB() + updA(buf == 0) + tail
            per = 1 if len(upd) <= 49 - pos else 2
            for k, s in enumerate(upd):
                slots[pos + k // per].append(s)
            for m in range(50):
                for s in pre.get(m, []):
                    if s.endswith(":"):
                        self.lab(s[:-1])
                    else:
                        a(s)
                if m == 49:
                    if self.diag and buf == 1:
                        a("s_memtime s[90:91]")
                    a("s_waitcnt lgkmcnt(0)")
                    if self.diag and buf == 1:
                        a(f"s_sub_u32 m0, 24, s{sCNT}")
                        a("s_nop 0")
                        a("v_writelane_b32 v15, s90, m0")
                        a(f"s_cmp_lg_u32 s{sCNT}, 0")
                a(mf[m])
                for s in slots[m]:
                    a(s)

        self.L.append(".p2align 6")
        self.lab(f"L_cloop_{tag}")
        step(0, tag + "0", [])
        a("s_barrier")
        step(1, tag + "1", [f"s_sub_u32 s{sCNT}, s{sCNT}, 1", f"s_cmp_lg_u32 s{sCNT}, 0"])
        a("s_barrier")
        a(f"s_cbranch_scc1 L_cloop_{tag}")
        self.stamp(5)
        T = XB[0]
        if sp:
            for j in range(4):
                a(f"ds_read_b128 v[{WB[1]+4*j}:{WB[1]+4*j+3}], v13 offset:{16*j}")
            a("s_waitcnt lgkmcnt(0)")
        a("s_nop 4")
        self.epi_row(8, WB[1] if sp else CST, f"s{sOQ}", T)
        for s in range(8):
            self.epi_row(s, CST, f"s{sOM}", T + 8 * ((s + 1) % 2))
            if s < 7:
                a(f"s_add_u32 s{sOM}, s{sOM}, 1152")
        self.stamp(6)
        if self.diag:
            a("s_waitcnt vmcnt(0)")
        self.stamp(7)
        if self.padend:
            self.spin(self.padend, "e" + tag)
        self.diag_out(8)
        a("s_endpgm")

    def build(self):
        L = self.L
        L.append(HEADER + "; @launch grid=(256,1,1) block=(512,1,1) lds=163840")
        L.append('.amdgcn_target "amdgcn-amd-amdhsa--gfx950"')
        L.append(".text")
        L.append(f".globl {NAME}")
        L.append(".p2align 8")
        L.append(f".type {NAME},@function")
        self.lab(NAME)
        self.entry()
        self.loader(False)
        self.lab("L_cons_n")
        self.consumer(False)
        self.lab("L_special")
        self.a(f"s_cmp_lt_u32 s{sWAVE}, 4")
        self.a("s_cbranch_scc1 L_cons_s")
        self.loader(True)
        self.lab("L_cons_s")
        self.consumer(True)
        self.lab("L_end")
        self.a("s_endpgm")
        L.append('.section .rodata,"a"')
        L.append(".p2align 6")
        L.append(f".amdhsa_kernel {NAME}")
        L.append("  .amdhsa_next_free_vgpr 256\n  .amdhsa_next_free_sgpr 102\n  .amdhsa_accum_offset 256\n"
                 "  .amdhsa_group_segment_fixed_size 0\n  .amdhsa_kernarg_size 72\n  .amdhsa_user_sgpr_count 2\n"
                 "  .amdhsa_user_sgpr_kernarg_segment_ptr 1\n  .amdhsa_system_sgpr_workgroup_id_x 1\n"
                 "  .amdhsa_float_denorm_mode_32 3")
        L.append(".end_amdhsa_kernel")
        return "\n".join(L) + "\n"


if __name__ == "__main__":
    import argparse
    ap = argparse.ArgumentParser()
    ap.add_argument("-o", default="standalone__batchnorm__sampling.s")
    ap.add_argument("--diag", action="store_true")
    ap.add_argument("--store", default="")
    ap.add_argument("--prio", type=int, default=0)
    ap.add_argument("--dfx", default="")
    ap.add_argument("--dfw", default="")
    ap.add_argument("--phases", type=int, default=1)
    ap.add_argument("--pro", type=int, default=0)
    ap.add_argument("--padend", type=int, default=0)
    ap.add_argument("--padb", type=int, default=0)
    o = ap.parse_args()
    open(o.o, "w").write(Gen(o.diag, o.store, o.prio, o.dfx, o.dfw, o.phases, o.pro, o.padend, o.padb).build())
```

```python
import sys

NAME = "standalone__batchnorm__sampling_kernel"
HEADER = """; Kernarg layout for this problem (72 bytes, ptrs only, base s[0:1]):
"""
XBYTES = 1024 * 8 * 576 * 2
WBYTES = 3 * 576 * 576 * 2
BG = 16 * 9216
TAP = 576 * 1152
NEG_LOG2E = 0xbfb8aa3b
OOB = 0x40000000
STASH = 159744

sX, sW, sO = 20, 24, 28
sWAVE, sL, sRHO, sCB, sG, sA = 36, 37, 38, 39, 40, 41
vXa, vXq, vW0, vW1, vWq0, vWq1, bXa, bW, vOut = 1, 2, 3, 4, 5, 6, 7, 8, 9
ACC = 16
XB = [88, 120]
XQ = 152
WB = [164, 188]
WQ = 212
CST = 236


class Gen:
    def __init__(self, diag=False, store_flags="", prio=0, dma_flags_x="", dma_flags_w="", phases=1, pro=0, padend=0, padb=0, gpad=0, enc=-1, encwg=-1):
        self.enc = enc
        self.encwg = encwg
        self.incons = False
        self.gpad = gpad
        self.padend = padend
        self.padb = padb
        self.phases = phases
        self.pro = pro
        self.L = []
        self.diag = diag
        self.store_flags = store_flags
        self.prio = prio
        self.dfx = dma_flags_x
        self.dfw = dma_flags_w

    def a(self, s):
        self.L.append("    " + s)

    def lab(self, s):
        self.L.append(s + ":")

    def acc(self, row, n):
        r = ACC + (row * 2 + n) * 4
        return f"v[{r}:{r+3}]"

    @staticmethod
    def q(r):
        return f"v[{r}:{r+3}]"

    def stamp(self, k):
        if self.diag:
            self.a(f"s_memtime s[{64+2*k}:{65+2*k}]")
        if self.enc == k and self.incons:
            self.a("s_memrealtime s[64:65]")

    def diag_out(self, nst):
        if not self.diag:
            return
        a = self.a
        a("s_memrealtime s[62:63]")
        a("s_waitcnt lgkmcnt(0)")
        a("s_mov_b32 s32, s18"); a("s_mov_b32 s33, s19"); a("s_mov_b32 s34, 0x100000"); a("s_mov_b32 s35, 0x20000")
        a("v_mov_b32 v10, v15")
        for k in range(nst):
            a(f"v_writelane_b32 v10, s{64+2*k}, {k}")
        a("v_writelane_b32 v10, s60, 30")
        a("v_writelane_b32 v10, s62, 31")
        a(f"s_lshl_b32 s3, s2, 3"); a(f"s_add_u32 s3, s3, s{sWAVE}"); a("s_lshl_b32 s3, s3, 7")
        a("v_mbcnt_lo_u32_b32 v11, -1, 0"); a("v_mbcnt_hi_u32_b32 v11, -1, v11")
        a("v_lshlrev_b32 v11, 2, v11")
        a("s_mov_b64 exec, 0xffffffff")
        a("buffer_store_dword v10, v11, s[32:35], s3 offen")

    def spin(self, ticks, uid):
        a = self.a
        self.lab(f"L_spin_{uid}")
        a("s_memrealtime s[62:63]")
        a("s_waitcnt lgkmcnt(0)")
        a("s_sub_u32 s3, s62, s60")
        a(f"s_cmp_lt_u32 s3, {ticks}")
        a(f"s_cbranch_scc1 L_spin_{uid}")

    def entry(self):
        a = self.a
        if self.diag or self.padend or self.padb or self.enc >= 0:
            a("s_memrealtime s[60:61]")
        self.stamp(0)
        a("s_cmp_ge_u32 s2, 256")
        a("s_cbranch_scc1 L_end")
        a("s_load_dwordx4 s[4:7], s[0:1], 0")
        a("s_load_dwordx4 s[8:11], s[0:1], 16")
        a("s_load_dwordx4 s[12:15], s[0:1], 32")
        a("s_load_dwordx2 s[16:17], s[0:1], 48")
        if self.diag:
            a("s_load_dwordx2 s[18:19], s[0:1], 64")
        a("v_lshrrev_b32 v1, 6, v0")
        a("v_and_b32 v0, 63, v0")
        a(f"s_and_b32 s{sL}, s2, 7")
        a(f"v_readfirstlane_b32 s{sWAVE}, v1")
        a(f"s_lshl_b32 s{sL}, s{sL}, 5")
        a("s_lshr_b32 s3, s2, 3")
        a(f"s_add_u32 s{sL}, s{sL}, s3")
        a(f"s_mul_i32 s{sRHO}, s{sL}, 7282")
        a(f"s_lshr_b32 s{sRHO}, s{sRHO}, 16")
        a(f"s_mul_i32 s3, s{sRHO}, 9")
        a(f"s_sub_u32 s{sCB}, s{sL}, s3")
        a(f"s_lshr_b32 s{sG}, s{sRHO}, 2")
        a(f"s_and_b32 s{sA}, s{sRHO}, 3")
        a(f"s_mov_b32 s{sX+2}, {XBYTES}"); a(f"s_mov_b32 s{sX+3}, 0x20000")
        a(f"s_mov_b32 s{sW+2}, {WBYTES}"); a(f"s_mov_b32 s{sW+3}, 0x20000")
        a(f"s_mov_b32 s{sO+2}, {XBYTES}"); a(f"s_mov_b32 s{sO+3}, 0x20000")
        a(f"s_cmp_ge_u32 s{sL}, 252")
        a("s_cbranch_scc1 L_special")
        a(f"s_cmp_lt_u32 s{sWAVE}, 4")
        a("s_cbranch_scc1 L_cons_n")

    def srds(self):
        a = self.a
        a("s_waitcnt lgkmcnt(0)")
        a(f"s_mov_b32 s{sX}, s4"); a(f"s_mov_b32 s{sX+1}, s5")
        a(f"s_mov_b32 s{sW}, s6"); a(f"s_mov_b32 s{sW+1}, s7")
        a(f"s_mov_b32 s{sO}, s16"); a(f"s_mov_b32 s{sO+1}, s17")

    def loader(self, sp):
        self.incons = False
        a = self.a
        tag = "s" if sp else "n"
        nB, nA = (9, 2) if sp else (3, 5)
        BSL = 36864 if sp else 12288
        ASL = 16384 if sp else 40960
        AREG = 3 * BSL
        sLW, sHB, sRP = 42, 43, 44
        sROW = 45
        sBO = 45 + 4
        sLA, sLB, sOA, sOB, sCNT = 80, 81, 82, 83, 84
        sT1, sT2 = 55, 56
        vA, vA16, vA18, vB = 2, 3, 4, 5
        a(f"s_and_b32 s{sLW}, s{sWAVE}, 3")
        a(f"s_and_b32 s{sHB}, s{sWAVE}, 1")
        a(f"s_bfe_u32 s{sRP}, s{sWAVE}, 0x10001")
        a("v_lshrrev_b32 v6, 3, v0")
        a("v_and_b32 v7, 7, v0")
        a("v_bfe_u32 v8, v0, 4, 1")
        a(f"s_lshl_b32 s3, s{sHB}, 1")
        a("v_or_b32 v8, s3, v8")
        a("v_lshlrev_b32 v8, 1, v8")
        a("v_xor_b32 v8, v8, v7")
        a("v_lshlrev_b32 v8, 4, v8")
        a("v_mul_u32_u24 v9, 1152, v6")
        a(f"s_mul_i32 s3, s{sLW}, {8*1152}")
        if not sp:
            a(f"s_lshl_b32 s46, s{sCB}, 7")
            a("s_add_u32 s3, s3, s46")
        a(f"v_add3_u32 v{vB}, v8, v9, s3")
        a(f"s_lshl_b32 s3, s{sHB}, 3")
        a("v_add_u32 v6, s3, v6")
        a("v_lshrrev_b32 v8, 1, v6")
        a("v_xor_b32 v8, v8, v7")
        a("v_lshlrev_b32 v8, 4, v8")
        a("v_mul_u32_u24 v9, 9216, v6")
        a(f"v_add_u32 v{vA}, v8, v9")
        a(f"s_mul_i32 s3, s{sRP}, 1152")
        if sp:
            a(f"s_sub_u32 s{sA}, s{sL}, 252")
            for k, r0 in enumerate((0, 2, 4, 6)):
                a(f"s_add_u32 s{sROW+k}, s3, {63*BG + r0*1152}")
            a(f"s_lshl_b32 s3, s{sA}, 8")
            for u in range(3):
                for t in range(3):
                    if u < 2:
                        a(f"s_add_u32 s{sBO+3*u+t}, s3, {t*TAP + u*128}")
                    else:
                        a(f"s_mov_b32 s{sBO+3*u+t}, {t*TAP + 1024}")
        else:
            a(f"s_mul_i32 s57, s{sG}, {9*BG}")
            a("s_add_u32 s3, s3, s57")
            a(f"s_mul_i32 s57, s{sA}, {2*BG}")
            a("s_add_u32 s57, s57, s3")
            for k in range(8):
                r0 = 2 * k
                off = r0 * 1152 if r0 < 8 else BG + (r0 - 8) * 1152
                a(f"s_add_u32 s{sROW+k}, s57, {off}")
            a(f"s_mul_i32 s57, s{sA}, 2304")
            a("s_add_u32 s57, s57, s3")
            a(f"s_add_u32 s{sROW+8}, s57, {8*BG - 1152}")
            a(f"s_add_u32 s{sROW+9}, s57, {8*BG + 1152}")
            a(f"s_mov_b32 s{sT1}, {TAP}")
            a(f"s_mov_b32 s{sT2}, {2*TAP}")
            a(f"s_lshl_b32 s3, s{sA}, 1"); a(f"s_add_u32 s3, s3, s{sRP}")
            a("s_cmp_eq_u32 s3, 0")
            a(f"s_cselect_b32 s57, {OOB}, 0")
            a(f"v_add_u32 v{vA16}, s57, v{vA}")
            a("s_cmp_eq_u32 s3, 7")
            a(f"s_cselect_b32 s57, {OOB}, 0")
            a(f"v_add_u32 v{vA18}, s57, v{vA}")
        a(f"s_lshl_b32 s{sLB}, s{sLW}, 10")
        a(f"s_lshl_b32 s3, s{sRP}, 11"); a(f"s_lshl_b32 s87, s{sHB}, 10")
        a("s_add_u32 s3, s3, s87"); a(f"s_add_u32 s{sLA}, s3, {AREG}")
        sKA, sKB = 88, 89
        P = self.phases
        if P > 1:
            a(f"s_add_u32 s3, s{sCB}, s{sRHO}")
            a(f"s_mul_i32 s87, s3, {(65536 + P - 1)//P}")
            a("s_lshr_b32 s87, s87, 16")
            a(f"s_mul_i32 s87, s87, {P}")
            a("s_sub_u32 s3, s3, s87")
            mul = {2: 4, 3: 3, 4: 2, 5: 2, 9: 1}[P]
            a(f"s_mul_i32 s{sKA}, s3, {mul}")
            a(f"s_lshl_b32 s{sKB}, s{sKA}, 1")
            a(f"s_lshl_b32 s3, s{sKA}, 7")
            a(f"v_add_u32 v{vA}, s3, v{vA}")
            if not sp:
                a(f"v_add_u32 v{vA16}, s3, v{vA16}")
                a(f"v_add_u32 v{vA18}, s3, v{vA18}")
            a(f"s_mul_i32 s3, s{sKB}, {32*1152}")
            a(f"v_add_u32 v{vB}, s3, v{vB}")
            a(f"s_mov_b32 s93, {32*1152}")
            a(f"s_movk_i32 s94, 128")
        self.srds()
        self.stamp(1)

        def issueB(base, static_off=0):
            for e in range(nB):
                if sp:
                    u, t = divmod(e, 3)
                    a(f"s_add_u32 m0, s{base}, {static_off + u*12288 + t*4096}")
                    so = f"s{sBO+e}"
                else:
                    a(f"s_add_u32 m0, s{base}, {static_off + e*4096}")
                    so = ["0", f"s{sT1}", f"s{sT2}"][e]
                a("s_nop 0")
                a(f"buffer_load_dwordx4 v{vB}, s[{sW}:{sW+3}], {so} offen {self.dfw} lds")
            if P > 1:
                a(f"s_add_u32 s{sKB}, s{sKB}, 1")
                a(f"s_cmp_eq_u32 s{sKB}, 18")
                a(f"s_cselect_b32 s3, {(-17*32*1152) & 0xffffffff:#x}, s93")
                a(f"s_cselect_b32 s{sKB}, 0, s{sKB}")
                a(f"v_add_u32 v{vB}, s3, v{vB}")
            else:
                a(f"v_add_u32 v{vB}, {32*1152}, v{vB}")

        def issueA(h, base, static_off=0):
            for j in range(nA):
                k = h * nA + j
                r0 = 2 * k
                a(f"s_add_u32 m0, s{base}, {static_off + r0*2048}")
                va = vA
                if not sp and r0 == 16: va = vA16
                if not sp and r0 == 18: va = vA18
                a("s_nop 0")
                a(f"buffer_load_dwordx4 v{va}, s[{sX}:{sX+3}], s{sROW+k} offen {self.dfx} lds")
            if h == 1:
                d = "128"
                if P > 1:
                    a(f"s_add_u32 s{sKA}, s{sKA}, 1")
                    a(f"s_cmp_eq_u32 s{sKA}, 9")
                    a(f"s_cselect_b32 s3, {(-8*128) & 0xffffffff:#x}, s94")
                    a(f"s_cselect_b32 s{sKA}, 0, s{sKA}")
                    d = "s3"
                a(f"v_add_u32 v{vA}, {d}, v{vA}")
                if not sp:
                    a(f"v_add_u32 v{vA16}, {d}, v{vA16}")
                    a(f"v_add_u32 v{vA18}, {d}, v{vA18}")

        if self.pro == 0:
            issueB(sLB, 0)
            issueA(0, sLA, 0); issueA(1, sLA, 0)
            issueB(sLB, BSL)
            issueA(0, sLA, ASL); issueA(1, sLA, ASL)
            issueB(sLB, 2 * BSL)
            issueA(0, sLA, 2 * ASL)
            self.stamp(2)
            a(f"s_waitcnt vmcnt({2*nB+3*nA})")
            self.stamp(3)
            a("s_barrier")
            a(f"s_waitcnt vmcnt({nB+3*nA})")
            a("s_barrier")
        elif self.pro == 1:
            issueB(sLB, 0)
            issueA(0, sLA, 0); issueA(1, sLA, 0)
            issueB(sLB, BSL)
            issueA(0, sLA, ASL)
            self.stamp(2)
            a(f"s_waitcnt vmcnt({nB+nA})")
            self.stamp(3)
            a("s_barrier")
            issueA(1, sLA, ASL)
            a(f"s_waitcnt vmcnt({2*nA})")
            a("s_barrier")
            issueB(sLB, 2 * BSL)
            issueA(0, sLA, 2 * ASL)
        elif self.pro == 2:
            issueB(sLB, 0)
            issueA(0, sLA, 0); issueA(1, sLA, 0)
            issueB(sLB, BSL)
            issueA(0, sLA, ASL); issueA(1, sLA, ASL)
            self.stamp(2)
            a(f"s_waitcnt vmcnt({nB+2*nA})")
            self.stamp(3)
            a("s_barrier")
            issueB(sLB, 2 * BSL)
            a(f"s_waitcnt vmcnt({2*nA+nB})")
            a("s_barrier")
            issueA(0, sLA, 2 * ASL)
        a(f"s_mov_b32 s{sOB}, s{sLB}")
        a(f"s_add_u32 s{sOA}, s{sLA}, {2*ASL}")
        a(f"s_add_u32 s85, s{sLB}, {3*BSL}")
        a(f"s_add_u32 s86, s{sLA}, {3*ASL}")

        def advB():
            a(f"s_add_u32 s{sOB}, s{sOB}, {BSL}")
            a(f"s_cmp_eq_u32 s{sOB}, s85")
            a(f"s_cselect_b32 s{sOB}, s{sLB}, s{sOB}")

        def advA():
            a(f"s_add_u32 s{sOA}, s{sOA}, {ASL}")
            a(f"s_cmp_eq_u32 s{sOA}, s86")
            a(f"s_cselect_b32 s{sOA}, s{sLA}, s{sOA}")

        a(f"s_mov_b32 s{sCNT}, 6")
        self.lab(f"L_lloop_{tag}")
        issueB(sOB); advB()
        issueA(1, sOA); advA()
        a(f"s_waitcnt vmcnt({nB+2*nA})")
        a("s_barrier")
        issueB(sOB); advB()
        issueA(0, sOA)
        a(f"s_sub_u32 s{sCNT}, s{sCNT}, 1")
        a(f"s_cmp_lg_u32 s{sCNT}, 0")
        a(f"s_waitcnt vmcnt({nB+2*nA})")
        a("s_barrier")
        a(f"s_cbranch_scc1 L_lloop_{tag}")
        issueB(sOB); advB()
        issueA(1, sOA)
        a(f"s_waitcnt vmcnt({nB+2*nA})")
        a("s_barrier")
        issueB(sOB); advB()
        a(f"s_waitcnt vmcnt({nB+nA})")
        a("s_barrier")
        issueB(sOB)
        a(f"s_waitcnt vmcnt({nB})")
        a("s_barrier")
        a("s_waitcnt vmcnt(0)")
        self.stamp(4)
        a("s_barrier")
        self.diag_out(5)
        a("s_endpgm")

    def params(self, dst, T):
        a = self.a
        U = T + 16
        for p in range(4):
            m, v, g, b = T + p, T + 4 + p, T + 8 + p, T + 12 + p
            x, y, z = U, U + 1, U + 2

            def rnd():
                a(f"v_cvt_pk_bf16_f32 v{z}, v{x}, v{y}")
                a(f"v_lshlrev_b32 v{x}, 16, v{z}")
                a(f"v_and_b32 v{y}, 0xffff0000, v{z}")
            a(f"v_lshlrev_b32 v{x}, 16, v{v}")
            a(f"v_and_b32 v{y}, 0xffff0000, v{v}")
            a(f"v_add_f32 v{x}, 0x3727c5ac, v{x}")
            a(f"v_add_f32 v{y}, 0x3727c5ac, v{y}")
            rnd()
            a(f"v_sqrt_f32 v{x}, v{x}")
            a(f"v_sqrt_f32 v{y}, v{y}")
            a("s_nop 0")
            rnd()
            a(f"v_rcp_f32 v{x}, v{x}")
            a(f"v_rcp_f32 v{y}, v{y}")
            a("s_nop 0")
            rnd()
            a(f"v_lshlrev_b32 v{z}, 16, v{g}")
            a(f"v_mul_f32 v{x}, v{x}, v{z}")
            a(f"v_and_b32 v{z}, 0xffff0000, v{g}")
            a(f"v_mul_f32 v{y}, v{y}, v{z}")
            rnd()
            a(f"v_lshlrev_b32 v{z}, 16, v{m}")
            a(f"v_lshlrev_b32 v{U+3}, 16, v{b}")
            a(f"v_fma_f32 v{z}, -v{z}, v{x}, v{U+3}")
            a(f"v_mul_f32 v{dst+8+2*p}, {NEG_LOG2E:#x}, v{z}")
            a(f"v_and_b32 v{z}, 0xffff0000, v{m}")
            a(f"v_and_b32 v{U+3}, 0xffff0000, v{b}")
            a(f"v_fma_f32 v{z}, -v{z}, v{y}, v{U+3}")
            a(f"v_mul_f32 v{dst+9+2*p}, {NEG_LOG2E:#x}, v{z}")
            a(f"v_mul_f32 v{dst+2*p}, {NEG_LOG2E:#x}, v{x}")
            a(f"v_mul_f32 v{dst+2*p+1}, {NEG_LOG2E:#x}, v{y}")

    def param_loads(self, T, voff):
        a = self.a
        for k, sp_ in enumerate((8, 10, 12, 14)):
            for n in range(2):
                a(f"global_load_dwordx2 v[{T+4*k+2*n}:{T+4*k+2*n+1}], v{voff}, s[{sp_}:{sp_+1}] offset:{32*n}")

    def epi_row(self, row, cst, soff, T):
        a = self.a
        r = ACC + row * 8
        for p in range(4):
            a(f"v_pk_fma_f32 v[{r+2*p}:{r+2*p+1}], v[{r+2*p}:{r+2*p+1}], v[{cst+2*p}:{cst+2*p+1}], v[{cst+8+2*p}:{cst+9+2*p}]")
        for i in range(8):
            a(f"v_exp_f32 v{T+i}, v{r+i}")
        for p in range(4):
            a(f"v_pk_fma_f32 v[{T+2*p}:{T+2*p+1}], v[{T+2*p}:{T+2*p+1}], s[58:59], s[58:59]")
        for i in range(8):
            a(f"v_rcp_f32 v{T+i}, v{T+i}")
        for p in range(4):
            a(f"v_pk_mul_f32 v[{T+2*p}:{T+2*p+1}], v[{T+2*p}:{T+2*p+1}], v[{r+2*p}:{r+2*p+1}]")
        for p in range(4):
            a(f"v_cvt_pk_bf16_f32 v{r+p}, v{T+2*p}, v{T+2*p+1}")
        a("s_nop 1")
        a(f"v_permlane16_swap_b32 v{r}, v{r+2}")
        a(f"v_permlane16_swap_b32 v{r+1}, v{r+3}")
        a(f"buffer_store_dwordx4 v[{r}:{r+3}], v{vOut}, s[{sO}:{sO+3}], {soff} offen {self.store_flags}")

    def consumer(self, sp):
        self.incons = True
        a = self.a
        tag = "s" if sp else "n"
        BSL = 36864 if sp else 12288
        ASL = 16384 if sp else 40960
        AREG = 3 * BSL
        sHM, sHN, sDQ, sDWQ, sOA, sOB, sCNT, sSK0, sSK2, sOM, sOQ = 42, 43, 44, 45, 46, 47, 48, 49, 50, 51, 52
        if self.prio:
            a(f"s_setprio {self.prio}")
        a(f"s_lshr_b32 s{sHM}, s{sWAVE}, 1")
        a(f"s_and_b32 s{sHN}, s{sWAVE}, 1")
        if sp:
            a(f"s_sub_u32 s{sA}, s{sL}, 252")
            a(f"s_lshl_b32 s{sCB}, s{sA}, 1")
            a(f"s_add_u32 s{sCB}, s{sCB}, s{sHM}")
        a("v_lshrrev_b32 v10, 4, v0")
        a("v_and_b32 v11, 15, v0")
        a(f"s_lshl_b32 s3, s{sHN}, 6")
        a(f"s_lshl_b32 s53, s{sCB}, 7")
        a("s_add_u32 s53, s53, s3")
        a("v_lshl_add_u32 v12, v10, 3, s53")
        if sp:
            a("s_add_u32 s54, s3, 1024")
            a("v_lshl_add_u32 v13, v10, 3, s54")
        a("v_lshrrev_b32 v14, 1, v11")
        a("v_xor_b32 v14, v14, v10")
        a("v_lshlrev_b32 v14, 4, v14")
        a("v_lshl_add_u32 v14, v11, 7, v14")
        if sp:
            a(f"v_add_u32 v{bXa}, {AREG}, v14")
            a(f"s_lshl_b32 s3, s{sA}, 1"); a(f"s_add_u32 s3, s3, s{sHM}")
            a("s_cmp_eq_u32 s3, 0"); a(f"s_cselect_b32 s{sSK0}, 1, 0")
            a("s_cmp_eq_u32 s3, 7"); a(f"s_cselect_b32 s{sSK2}, 1, 0")
            a(f"s_mul_i32 s{sOQ}, s3, 1152")
            a(f"s_add_u32 s{sOQ}, s{sOQ}, {63*BG}")
            a(f"s_add_u32 s{sOQ}, s{sOQ}, s54")
            a(f"s_add_u32 s{sOM}, s53, {63*BG}")
            a("s_lshl_b32 s3, s3, 11")
            a(f"s_sub_u32 s{sDQ}, s3, 2048")
            a(f"s_mul_i32 s55, s{sHM}, 12288")
            a(f"s_sub_u32 s{sDWQ}, 24576, s55")
        else:
            a(f"s_lshl_b32 s3, s{sHM}, 14")
            a(f"s_add_u32 s3, s3, {AREG}")
            a(f"v_add_u32 v{bXa}, s3, v14")
            a(f"s_mul_i32 s3, s{sHM}, {7*2048}")
            a(f"s_sub_u32 s{sDQ}, {16*2048}, s3")
            a(f"s_mul_i32 s3, s{sG}, {9*BG}")
            a("s_add_u32 s3, s3, s53")
            a(f"s_lshl_b32 s55, s{sA}, 1"); a(f"s_add_u32 s55, s55, s{sHM}")
            a(f"s_mul_i32 s{sOM}, s55, {BG}")
            a(f"s_add_u32 s{sOM}, s{sOM}, s3")
            a(f"s_mul_i32 s{sOQ}, s55, 1152")
            a(f"s_add_u32 s{sOQ}, s{sOQ}, s3")
            a(f"s_add_u32 s{sOQ}, s{sOQ}, {8*BG}")
            a("s_mov_b32 s55, 0")
        a("v_bfe_u32 v14, v0, 2, 2")
        a("v_lshl_add_u32 v15, v10, 3, v14")
        a("v_lshrrev_b32 v14, 1, v14")
        a("v_and_b32 v16, 1, v10")
        a("v_lshl_or_b32 v14, v16, 1, v14")
        a(f"s_lshl_b32 s3, s{sHN}, 1")
        a("v_xor_b32 v14, s3, v14")
        a("v_lshlrev_b32 v14, 5, v14")
        a("v_lshl_add_u32 v14, v15, 7, v14")
        a("v_and_b32 v15, 3, v0")
        a("v_lshl_add_u32 v14, v15, 3, v14")
        a(f"v_add_u32 v{bW}, s55, v14")
        a("v_mul_u32_u24 v14, 9216, v11")
        a("v_lshlrev_b32 v16, 5, v16")
        a("v_lshrrev_b32 v15, 1, v10")
        a("v_lshlrev_b32 v15, 4, v15")
        a(f"v_add3_u32 v{vOut}, v14, v15, v16")
        a(f"s_mov_b32 s58, {NEG_LOG2E:#x}"); a(f"s_mov_b32 s59, {NEG_LOG2E:#x}")
        self.srds()
        self.stamp(1)
        self.param_loads(XB[0], 12)
        if sp:
            self.param_loads(XB[1], 13)
            a(f"s_lshl_b32 s3, s{sHN}, 8"); a(f"s_add_u32 s3, s3, {STASH + 2048}")
            a("v_lshl_add_u32 v13, v10, 6, s3")
        for i in range(0, 72, 2):
            a(f"v_mov_b64 v[{ACC+i}:{ACC+i+1}], 0")
        a(f"v_mov_b32 v{vXa}, v{bXa}")
        a(f"v_add_u32 v{vXq}, s{sDQ}, v{bXa}")
        a(f"v_mov_b32 v{vW0}, v{bW}")
        a(f"v_xor_b32 v{vW1}, 32, v{bW}")
        if sp:
            a(f"v_add_u32 v{vWq0}, s{sDWQ}, v{vW0}")
            a(f"v_add_u32 v{vWq1}, s{sDWQ}, v{vW1}")
        a("s_waitcnt vmcnt(0)")
        if self.gpad:
            a("s_load_dwordx2 s[96:97], s[0:1], 56")
            a("s_waitcnt lgkmcnt(0)")
            a("s_not_b32 s3, s60")
            a("v_mov_b32 v14, s3")
            a("v_mov_b32 v15, 0")
            a(f"s_cmp_lg_u32 s{sWAVE}, 0")
            a(f"s_cbranch_scc1 L_noat_{tag}")
            a("s_mov_b64 exec, 1")
            a("global_atomic_umax v15, v14, s[96:97]")
            a("s_mov_b64 exec, -1")
            self.lab(f"L_noat_{tag}")
        if sp:
            self.params(WB[1], XB[1])
            for j in range(4):
                a(f"ds_write_b128 v13, v[{WB[1]+4*j}:{WB[1]+4*j+3}] offset:{16*j}")
        self.params(CST, XB[0])
        a(f"s_mov_b32 s{sOA}, 0")
        a(f"s_mov_b32 s{sOB}, 0")
        a(f"s_mov_b32 s{sCNT}, 9")
        if sp:
            a("s_waitcnt lgkmcnt(0)")
        self.stamp(2)
        if self.padb:
            self.spin(self.padb, "b" + tag)
        a("s_barrier")
        self.stamp(3)

        def rdW(buf):
            o = []
            for t in range(3):
                for n in range(2):
                    for hf in range(2):
                        r = WB[buf] + (t * 2 + n) * 4 + 2 * hf
                        o.append(f"ds_read_b64_tr_b16 v[{r}:{r+1}], v{[vW0, vW1][n]} offset:{t*4096 + hf*512}")
            return o

        def rdWq():
            o = []
            for t in range(3):
                for n in range(2):
                    for hf in range(2):
                        r = WQ + (t * 2 + n) * 4 + 2 * hf
                        o.append(f"ds_read_b64_tr_b16 v[{r}:{r+1}], v{[vWq0, vWq1][n]} offset:{t*4096 + hf*512}")
            return o

        def rdX(buf):
            return [f"ds_read_b128 {self.q(XB[buf]+4*s)}, v{vXa} offset:{s*2048}" for s in range(8)]

        def rdXq():
            return [f"ds_read_b128 {self.q(XQ+4*j)}, v{vXq} offset:{j*2048}" for j in range(3)]

        def updB():
            o = [f"s_add_u32 s{sOB}, s{sOB}, {BSL}", f"s_cmp_eq_u32 s{sOB}, {3*BSL}", f"s_cselect_b32 s{sOB}, 0, s{sOB}",
                 f"v_add_u32 v{vW0}, s{sOB}, v{bW}", f"v_xor_b32 v{vW1}, 32, v{vW0}"]
            if sp:
                o += [f"v_add_u32 v{vWq0}, s{sDWQ}, v{vW0}", f"v_add_u32 v{vWq1}, s{sDWQ}, v{vW1}"]
            return o

        def updA(newstage):
            if not newstage:
                return [f"v_xor_b32 v{vXa}, 64, v{vXa}", f"v_xor_b32 v{vXq}, 64, v{vXq}"]
            return [f"s_add_u32 s{sOA}, s{sOA}, {ASL}", f"s_cmp_eq_u32 s{sOA}, {3*ASL}", f"s_cselect_b32 s{sOA}, 0, s{sOA}",
                    f"v_add_u32 v{vXa}, s{sOA}, v{bXa}", f"v_add_u32 v{vXq}, s{sDQ}, v{vXa}"]

        for s in rdW(0) + rdX(0) + rdXq() + (rdWq() if sp else []):
            a(s)
        for s in updB() + updA(False):
            a(s)
        a("s_waitcnt lgkmcnt(0)")
        a("s_barrier")
        self.stamp(4)

        def step(buf, uid, tail):
            nb = 1 - buf
            mf = []
            wq = WQ if sp else WB[buf]

            def W(base, t, n):
                return self.q(base + (t * 2 + n) * 4)
            pre = {}
            post = {}
            if sp:
                order = [(1, 0), (1, 1), (0, 0), (0, 1), (2, 0), (2, 1)]
                pre[2] = [f"s_cmp_lg_u32 s{sSK0}, 0", f"s_cbranch_scc1 L_sk0_{uid}"]
                pre[4] = [f"L_sk0_{uid}:", f"s_cmp_lg_u32 s{sSK2}, 0", f"s_cbranch_scc1 L_sk2_{uid}"]
                pre[6] = [f"L_sk2_{uid}:"]
            else:
                order = [(t, n) for n in range(2) for t in range(3)]
            for (t, n) in order:
                mf.append(f"v_mfma_f32_16x16x32_bf16 {self.acc(8, n)}, {W(wq, t, n)}, {self.q(XQ+4*t)}, {self.acc(8, n)}")
            for s in range(8):
                for n in range(2):
                    for t in range(3):
                        si = s + t - 1
                        if 0 <= si < 8:
                            mf.append(f"v_mfma_f32_16x16x32_bf16 {self.acc(s, n)}, {W(WB[buf], t, n)}, {self.q(XB[buf]+4*si)}, {self.acc(s, n)}")
            assert len(mf) == 50
            slots = [[] for _ in range(50)]
            early = rdW(nb) + rdX(nb)
            late = rdXq() + (rdWq() if sp else [])
            if sp:
                seq = list(range(6, 50))
                fill = early + late
            else:
                seq = list(range(0, 50))
                fill = early[:6] + late + early[6:]
            for k, s in enumerate(fill):
                slots[seq[k]].append(s)
            pos = seq[len(fill)]
            upd = updB() + updA(buf == 0) + tail
            per = 1 if len(upd) <= 49 - pos else 2
            for k, s in enumerate(upd):
                slots[pos + k // per].append(s)
            for m in range(50):
                for s in pre.get(m, []):
                    if s.endswith(":"):
                        self.lab(s[:-1])
                    else:
                        a(s)
                if m == 49:
                    if self.diag and buf == 1:
                        a("s_memtime s[90:91]")
                    a("s_waitcnt lgkmcnt(0)")
                    if self.diag and buf == 1:
                        a(f"s_sub_u32 m0, 24, s{sCNT}")
                        a("s_nop 0")
                        a("v_writelane_b32 v15, s90, m0")
                        a(f"s_cmp_lg_u32 s{sCNT}, 0")
                a(mf[m])
                for s in slots[m]:
                    a(s)

        self.L.append(".p2align 6")
        self.lab(f"L_cloop_{tag}")
        step(0, tag + "0", [])
        a("s_barrier")
        step(1, tag + "1", [f"s_sub_u32 s{sCNT}, s{sCNT}, 1", f"s_cmp_lg_u32 s{sCNT}, 0"])
        a("s_barrier")
        a(f"s_cbranch_scc1 L_cloop_{tag}")
        self.stamp(5)
        T = XB[0]
        if sp:
            for j in range(4):
                a(f"ds_read_b128 v[{WB[1]+4*j}:{WB[1]+4*j+3}], v13 offset:{16*j}")
            a("s_waitcnt lgkmcnt(0)")
        a("s_nop 4")
        self.epi_row(8, WB[1] if sp else CST, f"s{sOQ}", T)
        for s in range(8):
            self.epi_row(s, CST, f"s{sOM}", T + 8 * ((s + 1) % 2))
            if s < 7:
                a(f"s_add_u32 s{sOM}, s{sOM}, 1152")
        self.stamp(6)
        if self.diag or self.enc == 7:
            a("s_waitcnt vmcnt(0)")
        self.stamp(7)
        if self.gpad:
            a("v_mov_b32 v15, 0")
            a("global_load_dword v14, v15, s[96:97] sc0 sc1")
            a("s_waitcnt vmcnt(0)")
            a("v_readfirstlane_b32 s3, v14")
            a("s_nop 3")
            a("s_not_b32 s60, s3")
        if self.enc >= 0:
            a("s_waitcnt lgkmcnt(0)")
            a("s_sub_u32 s64, s64, s60")
            a("s_mul_i32 s64, s64, 10")
            a("s_add_u32 s64, s64, 2000")
            if self.encwg >= 0:
                a(f"s_cmp_eq_u32 s2, {self.encwg}")
                a("s_cselect_b32 s64, s64, 0")
            self.spin("s64", "x" + tag)
        if self.padend:
            self.spin(self.padend, "e" + tag)
        self.diag_out(8)
        a("s_endpgm")

    def build(self):
        L = self.L
        L.append(HEADER + "; @launch grid=(256,1,1) block=(512,1,1) lds=163840")
        L.append('.amdgcn_target "amdgcn-amd-amdhsa--gfx950"')
        L.append(".text")
        L.append(f".globl {NAME}")
        L.append(".p2align 8")
        L.append(f".type {NAME},@function")
        self.lab(NAME)
        self.entry()
        self.loader(False)
        self.lab("L_cons_n")
        self.consumer(False)
        self.lab("L_special")
        self.a(f"s_cmp_lt_u32 s{sWAVE}, 4")
        self.a("s_cbranch_scc1 L_cons_s")
        self.loader(True)
        self.lab("L_cons_s")
        self.consumer(True)
        self.lab("L_end")
        self.a("s_endpgm")
        L.append('.section .rodata,"a"')
        L.append(".p2align 6")
        L.append(f".amdhsa_kernel {NAME}")
        L.append("  .amdhsa_next_free_vgpr 256\n  .amdhsa_next_free_sgpr 102\n  .amdhsa_accum_offset 256\n"
                 "  .amdhsa_group_segment_fixed_size 0\n  .amdhsa_kernarg_size 72\n  .amdhsa_user_sgpr_count 2\n"
                 "  .amdhsa_user_sgpr_kernarg_segment_ptr 1\n  .amdhsa_system_sgpr_workgroup_id_x 1\n"
                 "  .amdhsa_float_denorm_mode_32 3")
        L.append(".end_amdhsa_kernel")
        return "\n".join(L) + "\n"


if __name__ == "__main__":
    import argparse
    ap = argparse.ArgumentParser()
    ap.add_argument("-o", default="standalone__batchnorm__sampling.s")
    ap.add_argument("--diag", action="store_true")
    ap.add_argument("--store", default="")
    ap.add_argument("--prio", type=int, default=0)
    ap.add_argument("--dfx", default="")
    ap.add_argument("--dfw", default="")
    ap.add_argument("--phases", type=int, default=1)
    ap.add_argument("--pro", type=int, default=0)
    ap.add_argument("--padend", type=int, default=0)
    ap.add_argument("--padb", type=int, default=0)
    ap.add_argument("--gpad", type=int, default=0)
    ap.add_argument("--enc", type=int, default=-1)
    ap.add_argument("--encwg", type=int, default=-1)
    o = ap.parse_args()
    open(o.o, "w").write(Gen(o.diag, o.store, o.prio, o.dfx, o.dfw, o.phases, o.pro, o.padend, o.padb, o.gpad, o.enc, o.encwg).build())
```

```python
import sys

NAME = "standalone__batchnorm__sampling_kernel"
HEADER = """; Kernarg layout for this problem (72 bytes, ptrs only, base s[0:1]):
;   offset   0: d_in[0] x  shape=(1024, 8, 576) dtype=bfloat16 strides=(9216, 1152, 2) contiguous=True
;   offset   8: d_in[1] w  shape=(3, 576, 576) dtype=bfloat16 strides=(663552, 1152, 2) contiguous=True
;   offset  16: d_in[2] mean  shape=(576,) dtype=bfloat16 strides=(2,) contiguous=True
;   offset  24: d_in[3] var  shape=(576,) dtype=bfloat16 strides=(2,) contiguous=True
;   offset  32: d_in[4] g  shape=(576,) dtype=bfloat16 strides=(2,) contiguous=True
;   offset  40: d_in[5] b  shape=(576,) dtype=bfloat16 strides=(2,) contiguous=True
"""
XBYTES = 1024 * 8 * 576 * 2
WBYTES = 3 * 576 * 576 * 2
BG = 16 * 9216
TAP = 576 * 1152
NEG_LOG2E = 0xbfb8aa3b
OOB = 0x40000000
STASH = 159744
ZERO = STASH + 2048

sX, sW, sO = 20, 24, 28
sWAVE, sL, sRHO, sCB, sG, sA = 36, 37, 38, 39, 40, 41
ACC = 16
WB = [88, 112]
XB = [136, 168]
XQ = 200
WQ = 216
POOL = list(range(88, 256, 4))


class Cfg:
    def __init__(self, sp):
        self.sp = sp
        self.tag = "s" if sp else "n"
        self.NBS = 4 if sp else 3
        self.BSL = 27648 if sp else 12288
        self.NR = 8 if sp else 20
        self.HBS = self.NR * 1024
        self.ASL = 2 * self.HBS
        self.AREG = self.NBS * self.BSL

    def bplace(self, t):
        if not self.sp and t == 17:
            return self.AREG
        return (t % self.NBS) * self.BSL


def q4(r):
    return f"v[{r}:{r+3}]"


class Gen:
    def __init__(self, o):
        self.o = o
        self.L = []
        self.incons = False

    def a(self, s):
        self.L.append("    " + s)

    def lab(self, s):
        self.L.append(s + ":")

    def stamp(self, k):
        o = self.o
        if o.diag:
            self.a(f"s_memtime s[{64+2*k}:{65+2*k}]")
        if o.enc == k and self.incons:
            self.a("s_memrealtime s[64:65]")

    def spin(self, ticks, uid):
        a = self.a
        self.lab(f"L_spin_{uid}")
        a("s_memrealtime s[62:63]")
        a("s_waitcnt lgkmcnt(0)")
        a("s_sub_u32 s3, s62, s60")
        a(f"s_cmp_lt_u32 s3, {ticks}")
        a(f"s_cbranch_scc1 L_spin_{uid}")

    def diag_out(self, nst):
        if not self.o.diag:
            return
        a = self.a
        a("s_memrealtime s[62:63]")
        a("s_waitcnt lgkmcnt(0)")
        a("s_mov_b32 s32, s18"); a("s_mov_b32 s33, s19"); a("s_mov_b32 s34, 0x100000"); a("s_mov_b32 s35, 0x20000")
        a("v_mov_b32 v100, v15")
        for k in range(nst):
            a(f"v_writelane_b32 v100, s{64+2*k}, {k}")
        a("v_writelane_b32 v100, s60, 30")
        a("v_writelane_b32 v100, s62, 31")
        a(f"s_lshl_b32 s3, s2, 3"); a(f"s_add_u32 s3, s3, s{sWAVE}"); a("s_lshl_b32 s3, s3, 7")
        a("v_mbcnt_lo_u32_b32 v101, -1, 0"); a("v_mbcnt_hi_u32_b32 v101, -1, v101")
        a("v_lshlrev_b32 v101, 2, v101")
        a("s_bfm_b64 exec, 32, 0")
        a("buffer_store_dword v100, v101, s[32:35], s3 offen")

    def entry(self):
        a = self.a
        o = self.o
        if o.diag or o.padend or o.enc >= 0:
            a("s_memrealtime s[60:61]")
        self.stamp(0)
        a("s_cmp_ge_u32 s2, 256")
        a("s_cbranch_scc1 L_end")
        a("s_load_dwordx8 s[4:11], s[0:1], 0")
        a("s_load_dwordx4 s[12:15], s[0:1], 32")
        a("s_load_dwordx2 s[16:17], s[0:1], 48")
        if o.diag:
            a("s_load_dwordx2 s[18:19], s[0:1], 64")
        a("v_lshrrev_b32 v1, 6, v0")
        a("v_and_b32 v0, 63, v0")
        a(f"s_and_b32 s{sL}, s2, 7")
        a(f"v_readfirstlane_b32 s{sWAVE}, v1")
        a(f"s_lshl_b32 s{sL}, s{sL}, 5")
        a("s_lshr_b32 s3, s2, 3")
        a(f"s_add_u32 s{sL}, s{sL}, s3")
        a(f"s_mul_i32 s{sRHO}, s{sL}, 7282")
        a(f"s_lshr_b32 s{sRHO}, s{sRHO}, 16")
        a(f"s_mul_i32 s32, s{sRHO}, 9")
        a(f"s_sub_u32 s{sCB}, s{sL}, s32")
        a(f"s_lshr_b32 s{sG}, s{sRHO}, 2")
        a(f"s_and_b32 s{sA}, s{sRHO}, 3")
        a(f"s_mov_b32 s{sX+2}, {XBYTES}"); a(f"s_mov_b32 s{sX+3}, 0x20000")
        a(f"s_mov_b32 s{sW+2}, {WBYTES}"); a(f"s_mov_b32 s{sW+3}, 0x20000")
        a(f"s_cmp_lt_u32 s{sWAVE}, 4")
        a("s_cbranch_scc1 L_cons")
        a(f"s_cmp_ge_u32 s{sL}, 252")
        a("s_cbranch_scc1 L_load_s")

    def loader(self, c):
        a = self.a
        o = self.o
        sp = c.sp
        self.incons = False
        sLW, sHB, sRP = 42, 43, 44
        sROW = 45
        sBO = 55 if not sp else 49
        sLA, sLB, sLQ, sMQ, s128, sQO = 80, 81, 82, 83, 84, 85
        vA, vAq0, vAq1, vB, vBq, vPX, vPW, vDum, vCol, vPar = 2, 3, 4, 5, 6, 10, 11, 12, 20, 24
        a(f"s_and_b32 s{sLW}, s{sWAVE}, 3")
        a(f"s_and_b32 s{sHB}, s{sWAVE}, 1")
        a(f"s_bfe_u32 s{sRP}, s{sWAVE}, 0x10001")
        a("v_lshrrev_b32 v16, 3, v0")
        a("v_and_b32 v17, 7, v0")
        a("v_bfe_u32 v8, v0, 4, 1")
        a(f"s_lshl_b32 s3, s{sHB}, 2")
        a("v_lshl_or_b32 v8, v8, 1, s3")
        a("v_xor_b32 v8, v8, v17")
        a("v_lshlrev_b32 v8, 4, v8")
        a("v_mul_u32_u24 v9, 1152, v16")
        a(f"s_mul_i32 s3, s{sLW}, {8*1152}")
        a(f"s_lshl_b32 s32, s{sCB}, {8 if sp else 7}")
        a("s_add_u32 s3, s3, s32")
        a(f"v_add3_u32 v{vB}, v8, v9, s3")
        a(f"s_mul_i32 s{sLB}, s{sLW}, 3072")
        if sp:
            for u in range(2):
                for t in range(3):
                    a(f"s_mov_b32 s{sBO+3*u+t}, {t*(TAP-1024) + u*128}")
            a("v_lshrrev_b32 v8, 1, v0")
            a("v_bfe_u32 v9, v0, 4, 1")
            a("v_lshlrev_b32 v9, 2, v9")
            a("v_xor_b32 v8, v8, v9")
            a("v_mul_u32_u24 v8, 1152, v8")
            a("v_and_b32 v9, 1, v0")
            a("v_lshl_add_u32 v8, v9, 4, v8")
            a(f"s_lshl_b32 s3, s{sCB}, 5")
            a("s_add_u32 s3, s3, 1024")
            a(f"s_mul_i32 s{sQO}, s{sLW}, {TAP}")
            a(f"s_lshl_b32 s{sLQ}, s{sLW}, 10")
            a(f"s_add_u32 s{sLQ}, s{sLQ}, 24576")
            a(f"s_cmp_eq_u32 s{sLW}, 3")
            a(f"s_cselect_b32 s3, {OOB}, s3")
            a(f"s_cselect_b32 s{sQO}, 0, s{sQO}")
            a(f"s_cselect_b32 s{sLQ}, {ZERO}, s{sLQ}")
            a(f"s_cselect_b32 s{sMQ}, 0, -1")
            a(f"v_add_u32 v{vBq}, s3, v8")
        else:
            a(f"s_mov_b32 s{sBO}, {TAP-1024}")
            a(f"s_mov_b32 s{sBO+1}, {2*(TAP-1024)}")

        def setupA():
            a(f"s_lshl_b32 s3, s{sHB}, 3")
            a("v_add_u32 v16, s3, v16")
            a("v_lshrrev_b32 v8, 1, v16")
            a("v_xor_b32 v8, v8, v17")
            a("v_lshlrev_b32 v8, 4, v8")
            a("v_mul_u32_u24 v9, 9216, v16")
            a(f"v_add_u32 v{vA}, v8, v9")
            a(f"s_mul_i32 s{sLA}, s{sHB}, {c.HBS}")
            a(f"s_movk_i32 s{s128}, 128")
            if sp:
                a(f"s_mul_i32 s3, s{sRP}, {4*1152}")
                for k, off in enumerate((0, 128, 2304, 2432)):
                    a(f"s_add_u32 s{sROW+k}, s3, {63*BG + off}")
                a(f"s_lshl_b32 s3, s{sRP}, 12")
                a(f"s_add_u32 s{sLA}, s{sLA}, s3")
            else:
                a(f"s_mul_i32 s32, s{sG}, {9*BG}")
                a(f"s_lshl_b32 s3, s{sA}, 1")
                a(f"s_add_u32 s33, s3, s{sRP}")
                a(f"s_mul_i32 s34, s33, {BG}")
                a("s_add_u32 s34, s34, s32")
                for k, off in enumerate((0, 128, 256, 384, 4608, 5760, 5888, 6016)):
                    a(f"s_add_u32 s{sROW+k}, s34, {off}")
                a(f"s_add_u32 s3, s{sA}, s{sRP}")
                a("s_mul_i32 s3, s3, 2304")
                a("s_add_u32 s3, s3, s32")
                a(f"s_add_u32 s{sROW+8}, s3, {8*BG - 1152}")
                a(f"s_add_u32 s{sROW+9}, s3, {8*BG - 1152 + 128}")
                a("s_cmp_eq_u32 s33, 0")
                a(f"s_cselect_b32 s3, {OOB}, 0")
                a(f"v_add_u32 v{vAq0}, s3, v{vA}")
                a("s_cmp_eq_u32 s33, 7")
                a(f"s_cselect_b32 s3, {OOB}, 0")
                a(f"v_add_u32 v{vAq1}, s3, v{vA}")
                a(f"s_lshl_b32 s3, s{sRP}, 11")
                a(f"s_add_u32 s{sLQ}, s{sLA}, s3")
                a(f"s_lshl_b32 s3, s{sRP}, 13")
                a(f"s_add_u32 s{sLA}, s{sLA}, s3")

        def setupP():
            a(f"s_lshl_b32 s3, s{sL}, 2"); a(f"s_add_u32 s3, s3, s{sLW}")
            a(f"s_mul_i32 s32, s3, {8*1152}")
            a("v_mul_u32_u24 v13, 1152, v17")
            a("v_lshrrev_b32 v14, 3, v0")
            a("v_lshlrev_b32 v14, 7, v14")
            a(f"v_add3_u32 v{vPX}, v13, v14, s32")
            a("s_lshl_b32 s3, s3, 1")
            a("v_and_or_b32 v13, v0, 1, s3")
            a("v_mul_u32_u24 v14, 3641, v13")
            a("v_lshrrev_b32 v14, 21, v14")
            a(f"v_mul_u32_u24 v14, {TAP - 576*128}, v14")
            a("v_lshl_add_u32 v14, v13, 7, v14")
            a("v_lshrrev_b32 v13, 1, v0")
            a(f"v_mul_u32_u24 v13, {64*1152}, v13")
            a("s_cmp_lt_u32 s3, 1728")
            a(f"s_cselect_b32 s3, 0, {OOB}")
            a(f"v_add3_u32 v{vPW}, v13, v14, s3")
            if o.pfirst:
                a(f"v_add_u32 v{vPX}, {128*o.pfirst}, v{vPX}")
                a(f"v_add_u32 v{vPW}, {64*1152*o.pfirst}, v{vPW}")

        def setupPar():
            if sp:
                a(f"s_lshl_b32 s3, s{sCB}, 1"); a(f"s_add_u32 s3, s3, s{sLW}")
                a(f"s_cmp_ge_u32 s{sLW}, 2")
                a("s_cselect_b32 s3, 8, s3")
                a("s_lshl_b32 s3, s3, 7")
            else:
                a(f"s_lshl_b32 s3, s{sCB}, 7")
            a(f"v_lshl_add_u32 v{vCol}, v0, 1, s3")

        seq = []
        pend = []
        done = set()
        state = {"covered": 0}

        def flush(reg=None):
            for p in list(pend):
                if reg is None or p[0] in reg:
                    a(p[1]); pend.remove(p)

        def m0(expr_lines, regs):
            need = [p for p in pend if p[0] in regs]
            for p in need[1:]:
                a(p[1]); pend.remove(p)
            for e in expr_lines:
                a(e)
            if need:
                a(need[0][1]); pend.remove(need[0])
            elif pend:
                a(pend.pop(0)[1])
            else:
                a("s_nop 0")

        def dma(v, srd, so, off, flags, tok):
            offs = f" offset:{off}" if off else ""
            a(f"buffer_load_dwordx4 v{v}, s[{srd}:{srd+3}], {so} offen{offs} {flags} lds".replace("  ", " "))
            seq.append(tok)

        def tokB(t):
            tok = f"B{t}"
            base = c.bplace(t)
            for u in range(2 if sp else 1):
                m0([f"s_add_u32 m0, s{sLB}, {base + u*12288}"], [vB])
                for tp in range(3):
                    if sp:
                        so = f"s{sBO+3*u+tp}"
                    else:
                        so = ["0", f"s{sBO}", f"s{sBO+1}"][tp]
                    dma(vB, sW, so, tp * 1024, o.dfw, tok)
            if t < 17:
                pend.append((vB, f"v_add_u32 v{vB}, {32*1152}, v{vB}"))
            if sp:
                m0([f"s_and_b32 s3, s{sMQ}, {base}", f"s_add_u32 m0, s3, s{sLQ}"], [vBq])
                dma(vBq, sW, f"s{sQO}", 0, o.dfw, tok)
                if t < 17:
                    pend.append((vBq, f"v_add_u32 v{vBq}, {32*1152}, v{vBq}"))

        def tokA(T, h):
            tok = f"A{T}h{h}"
            base = c.AREG + (T % 3) * c.ASL
            if sp:
                m0([f"s_add_u32 m0, s{sLA}, {base + h*2048}"], [vA])
                for j in range(2):
                    dma(vA, sX, f"s{sROW+2*h+j}", j * 1024, o.dfx, tok)
            elif h == 0:
                m0([f"s_add_u32 m0, s{sLA}, {base}"], [vA])
                for k in range(4):
                    dma(vA, sX, f"s{sROW+k}", k * 1024, o.dfx, tok)
                m0([f"s_add_u32 m0, s{sLA}, {base + 4096}"], [vA])
                dma(vA, sX, f"s{sROW+4}", 0, o.dfx, tok)
            else:
                m0([f"s_add_u32 m0, s{sLA}, {base + 5120}"], [vA])
                for k in range(3):
                    dma(vA, sX, f"s{sROW+5+k}", k * 1024, o.dfx, tok)
                m0([f"s_add_u32 m0, s{sLQ}, {base + 16384}"], [vAq0, vAq1])
                dma(vAq0, sX, f"s{sROW+8}", 0, o.dfx, tok)
                dma(vAq1, sX, f"s{sROW+9}", 1024, o.dfx, tok)
            if h == 1 and T < 8:
                for v in ([vA] if sp else [vA, vAq0, vAq1]):
                    pend.append((v, f"v_add_u32 v{v}, s{s128}, v{v}"))

        def tokP(n):
            flush([vPX, vPW])
            a(f"s_bfm_b64 exec, {2*n}, 0")
            a(f"buffer_load_dword v{vDum}, v{vPW}, s[{sW}:{sW+3}], 0 offen")
            if n < 8:
                a(f"s_bfm_b64 exec, {8*n}, 0")
            else:
                a("s_mov_b64 exec, -1")
            a(f"buffer_load_dword v{vDum+1}, v{vPX}, s[{sX}:{sX+3}], 0 offen")
            a("s_mov_b64 exec, -1")
            seq.extend(["P", "P"])
            pend.append((vPW, f"v_add_u32 v{vPW}, {64*1152*n}, v{vPW}"))
            pend.append((vPX, f"v_add_u32 v{vPX}, {128*n}, v{vPX}"))

        def tokPar():
            for k, sp_ in enumerate((8, 10, 12, 14)):
                a(f"global_load_ushort v{vPar+k}, v{vCol}, s[{sp_}:{sp_+1}]")
                seq.append("PAR")

        def wait_for(toks):
            last = max(i for i, t in enumerate(seq) if t in toks)
            for t in toks:
                assert t in seq, t
            if last + 1 > state["covered"]:
                n = len(seq) - 1 - last
                assert n <= 63
                a(f"s_waitcnt vmcnt({n})")
                state["covered"] = last + 1

        def parmath():
            wait_for(["PAR"])
            m, v, g, b, z = vPar, vPar + 1, vPar + 2, vPar + 3, vPar + 4

            def rnd():
                a(f"v_cvt_pk_bf16_f32 v{v}, v{v}, v{v}")
                a(f"v_lshlrev_b32 v{v}, 16, v{v}")
            a(f"v_lshlrev_b32 v{v}, 16, v{v}")
            a(f"v_add_f32 v{v}, 0x3727c5ac, v{v}")
            rnd()
            a(f"v_sqrt_f32 v{v}, v{v}")
            a(f"v_lshlrev_b32 v{g}, 16, v{g}")
            rnd()
            a(f"v_rcp_f32 v{v}, v{v}")
            a(f"v_lshlrev_b32 v{m}, 16, v{m}")
            rnd()
            a(f"v_mul_f32 v{v}, v{v}, v{g}")
            rnd()
            a(f"v_lshlrev_b32 v{b}, 16, v{b}")
            a(f"v_fma_f32 v{b}, -v{m}, v{v}, v{b}")
            a(f"v_mul_f32 v{v}, {NEG_LOG2E:#x}, v{v}")
            a(f"v_mul_f32 v{b}, {NEG_LOG2E:#x}, v{b}")
            a(f"s_lshl_b32 s3, s{sLW}, 9")
            a(f"s_add_u32 s3, s3, {STASH}")
            a(f"v_lshl_add_u32 v{z}, v0, 2, s3")
            a(f"ds_write2st64_b32 v{z}, v{v}, v{b} offset1:1")

        def needs(k):
            if k == -1:
                return ["B0", "A0h0", "A0h1"]
            if k == 13:
                return ["B14", "B15", "A7h0", "A7h1"]
            if k == 14:
                return ["B16", "B17", "A8h0", "A8h1"]
            T = (k + 1) // 2
            return [f"B{k+1}", f"A{T}h0", f"A{T}h1"]

        pro = (o.pro_s if sp else o.pro_n).split()
        toks = list(pro)
        have = set(t for t in toks)
        pins = {}
        for e in o.pins.split():
            k, n = e.split(":")
            pins[int(k)] = int(n)
        for t in range(0, 14):
            iv = []
            bt = t + c.NBS
            if bt <= 17 and f"B{bt}" not in have:
                iv.append(f"B{bt}")
            if not sp and t == 13:
                iv.append("B17")
            if t in pins:
                iv.append(f"P{pins[t]}")
            T, h = (t // 2 + 2, 1) if t % 2 == 0 else ((t - 1) // 2 + 3, 0)
            if T <= 8 and f"A{T}h{h}" not in have:
                iv.append(f"A{T}h{h}")
            if t == o.parat:
                iv.append("MATH")
            toks += iv + [f"bar{t+1}"]
        started = False
        for tk in toks:
            if tk[0] in "BAP" and tk not in ("PAR",) and not started and tk != "SA" and tk != "SP":
                pass
            if tk == "GO":
                a("s_waitcnt lgkmcnt(0)")
                a(f"s_mov_b32 s{sX}, s4"); a(f"s_mov_b32 s{sX+1}, s5")
                a(f"s_mov_b32 s{sW}, s6"); a(f"s_mov_b32 s{sW+1}, s7")
                self.stamp(1)
            elif tk == "SA":
                setupA()
            elif tk == "SP":
                setupP()
            elif tk == "PAR":
                setupPar()
                tokPar()
            elif tk == "MATH":
                parmath()
            elif tk.startswith("bar"):
                k = int(tk[3:])
                if k == -1:
                    self.stamp(2)
                wait_for(needs(k))
                if k == 14:
                    a("s_waitcnt lgkmcnt(0)")
                if k in (-1, 0, 1, 2, 14):
                    self.stamp({-1: 3, 0: 4, 1: 5, 2: 6, 14: 7}[k])
                a("s_barrier")
            elif tk[0] == "B":
                tokB(int(tk[1:]))
            elif tk[0] == "A":
                tokA(int(tk[1]), int(tk[3]))
            elif tk[0] == "P":
                tokP(int(tk[1:]))
            else:
                raise ValueError(tk)
        exp = [f"B{t}" for t in range(18)] + [f"A{T}h{h}" for T in range(9) for h in range(2)]
        for e in exp:
            assert e in seq, e
        self.diag_out(8)
        a("s_endpgm")

    def cons_common(self):
        a = self.a
        o = self.o
        if o.prio:
            a(f"s_setprio {o.prio}")
        if o.cpf:
            a("s_getpc_b64 s[42:43]")
            self.lab("L_pc")
            a("s_lshr_b32 s3, s2, 3")
            a("s_lshl_b32 s3, s3, 2")
            a(f"s_add_u32 s3, s3, s{sWAVE}")
            a(f"s_mul_i32 s3, s3, {64*o.cpf}")
            a(f"s_min_u32 s3, s3, L_end-{NAME}-{64*o.cpf}")
            a(f"s_sub_u32 s42, s42, L_pc-{NAME}")
            a("s_subb_u32 s43, s43, 0")
            a("s_add_u32 s42, s42, s3")
            a("s_addc_u32 s43, s43, 0")
            for k in range(o.cpf):
                a(f"s_load_dword s{44+k}, s[42:43], {64*k}")
        a("v_lshrrev_b32 v10, 4, v0")
        a("v_and_b32 v11, 15, v0")
        a("v_lshrrev_b32 v14, 1, v11")
        a("v_xor_b32 v14, v14, v10")
        a("v_lshlrev_b32 v14, 4, v14")
        a("v_and_b32 v12, 7, v0")
        a("v_lshl_add_u32 v14, v12, 7, v14")
        a("v_bfe_u32 v13, v0, 3, 1")
        a("v_bfe_u32 v16, v0, 2, 2")
        a("v_and_b32 v17, 1, v10")
        a("v_and_b32 v18, 3, v0")
        a(f"s_cmp_ge_u32 s{sL}, 252")
        a("s_cbranch_scc1 L_cons_s")

    def consumer(self, c):
        a = self.a
        o = self.o
        sp = c.sp
        tag = c.tag
        self.incons = True
        vXa, vXq, vW0, vW1, bXa, bW, vOut = 1, 2, 3, 4, 5, 6, 7
        vWq0, vWq1, bWq, vXqA, vXqD, bXqA, bXqD = 8, 9, 10, 11, 12, 13, 14
        vCst = 0 if sp else 8
        sHM, sHN, sDQ, sOA, sOB, sCNT, sMA, sMD, sC = 56, 57, 58, 59, 80, 81, 82, 83, 84
        sOUT = 86
        a(f"s_lshr_b32 s{sHM}, s{sWAVE}, 1")
        a(f"s_and_b32 s{sHN}, s{sWAVE}, 1")
        a(f"v_mul_u32_u24 v13, {c.HBS}, v13")
        if sp:
            a("v_add_u32 v14, v13, v14")
            a(f"v_add_u32 v{bXa}, {c.AREG}, v14")
            a(f"s_lshl_b32 s{sDQ}, s{sWAVE}, 11")
        else:
            a(f"s_lshl_b32 s3, s{sHM}, 13")
            a(f"s_add_u32 s3, s3, {c.AREG}")
            a(f"v_add3_u32 v{bXa}, v13, v14, s3")
            a(f"s_mul_i32 s3, s{sHM}, 7168")
            a(f"s_sub_u32 s{sDQ}, 16384, s3")
        a("v_lshrrev_b32 v14, 1, v16")
        a("v_lshl_or_b32 v14, v17, 1, v14")
        a(f"s_lshl_b32 s3, s{sHN}, 1")
        a("v_xor_b32 v14, s3, v14")
        a("v_lshlrev_b32 v14, 5, v14")
        a("v_lshl_add_u32 v14, v16, 7, v14")
        a("v_lshl_add_u32 v14, v18, 3, v14")
        a("v_mul_u32_u24 v15, 3072, v10")
        if sp:
            a(f"s_mul_i32 s3, s{sHM}, 12288")
            a(f"v_add3_u32 v{bW}, v14, v15, s3")
        else:
            a(f"v_add_u32 v{bW}, v14, v15")
        a("v_mul_u32_u24 v14, 9216, v11")
        a("v_lshrrev_b32 v15, 1, v10")
        a("v_lshl_add_u32 v19, v15, 4, v14")
        a(f"v_lshl_add_u32 v{vOut}, v17, 5, v19")
        a(f"s_lshl_b32 s32, s{sHN}, 6")
        if sp:
            a(f"s_lshl_b32 s3, s{sCB}, 1"); a(f"s_add_u32 s3, s3, s{sHM}")
            a("s_lshl_b32 s3, s3, 7")
            a("s_add_u32 s3, s3, s32")
            a(f"s_add_u32 s{sOUT}, s3, {63*BG}")
            a(f"s_mul_i32 s3, s{sWAVE}, 2304")
            a(f"s_lshl_b32 s33, s{sCB}, 5")
            a("s_add_u32 s3, s3, s33")
            a(f"s_add_u32 s{sOUT+8}, s3, {63*BG + 1024}")
        else:
            a(f"s_lshl_b32 s3, s{sCB}, 7")
            a("s_add_u32 s32, s32, s3")
            a(f"s_mul_i32 s3, s{sG}, {9*BG}")
            a("s_add_u32 s32, s32, s3")
            a(f"s_lshl_b32 s3, s{sA}, 1"); a(f"s_add_u32 s3, s3, s{sHM}")
            a(f"s_mul_i32 s33, s3, {BG}")
            a(f"s_add_u32 s{sOUT}, s33, s32")
            a("s_mul_i32 s33, s3, 1152")
            a("s_add_u32 s33, s33, s32")
            a(f"s_add_u32 s{sOUT+8}, s33, {8*BG}")
        for s in range(1, 8):
            a(f"s_add_u32 s{sOUT+s}, s{sOUT}, {s*1152}")
        a(f"s_mov_b32 s{sC}, {NEG_LOG2E:#x}"); a(f"s_mov_b32 s{sC+1}, {NEG_LOG2E:#x}")
        a(f"s_lshl_b32 s3, s{sHN}, 7")
        if sp:
            a(f"s_lshl_b32 s33, s{sHM}, 9")
            a("s_add_u32 s3, s3, s33")
        a(f"s_add_u32 s3, s3, {STASH}")
        if sp:
            vG16, vOutQ = 236, 237
            a(f"v_lshlrev_b32 v{vG16}, 4, v10")
            a(f"s_mov_b32 s95, s3")
            a(f"s_lshl_b32 s96, s{sCB}, 6")
            a(f"s_add_u32 s96, s96, {STASH + 1024}")
            a("v_mul_u32_u24 v15, 1152, v17")
            a(f"v_add_u32 v{vOutQ}, v15, v19")
            a("v_lshl_add_u32 v14, v10, 3, v16")
            a("v_lshlrev_b32 v15, 2, v17")
            a("v_xor_b32 v14, v14, v15")
            a("v_lshlrev_b32 v14, 5, v14")
            a("v_lshl_add_u32 v14, v18, 3, v14")
            a(f"v_add_u32 v{bWq}, 24576, v14")
            a(f"v_mov_b32 v19, {ZERO}")
            a(f"s_sub_u32 s3, s{sDQ}, 1024")
            a(f"v_add_u32 v{bXqA}, s3, v{bXa}")
            a(f"s_add_u32 s3, s{sDQ}, 2048")
            a(f"v_add_u32 v{bXqD}, s3, v{bXa}")
            a(f"s_cmp_eq_u32 s{sWAVE}, 0")
            a(f"s_cselect_b32 s{sMA}, 0, -1")
            a("s_cselect_b64 vcc, -1, 0")
            a(f"v_cndmask_b32 v{bXqA}, v{bXqA}, v19, vcc")
            a(f"s_cmp_eq_u32 s{sWAVE}, 3")
            a(f"s_cselect_b32 s{sMD}, 0, -1")
            a("s_cselect_b64 vcc, -1, 0")
            a(f"v_cndmask_b32 v{bXqD}, v{bXqD}, v19, vcc")
            a(f"v_mov_b32 v{vXqA}, v{bXqA}")
            a(f"v_mov_b32 v{vXqD}, v{bXqD}")
            a(f"v_mov_b32 v{vWq0}, v{bWq}")
            a(f"v_xor_b32 v{vWq1}, 128, v{bWq}")
        else:
            a(f"v_lshl_add_u32 v{vCst}, v10, 4, s3")
        a(f"v_mov_b32 v{vXa}, v{bXa}")
        a(f"v_add_u32 v{vXq}, s{sDQ}, v{bXa}")
        a(f"v_mov_b32 v{vW0}, v{bW}")
        a(f"v_xor_b32 v{vW1}, 32, v{bW}")
        a(f"s_mov_b32 s{sOA}, 0")
        a(f"s_mov_b32 s{sOB}, 0")
        a(f"s_mov_b32 s{sCNT}, 6")
        a(f"s_mov_b32 s{sO+2}, {XBYTES}"); a(f"s_mov_b32 s{sO+3}, 0x20000")
        a("s_waitcnt lgkmcnt(0)")
        a(f"s_mov_b32 s{sO}, s16"); a(f"s_mov_b32 s{sO+1}, s17")
        self.stamp(1)
        a("s_barrier")
        self.stamp(3)

        def acc(row, n):
            return ACC + (row * 2 + n) * 4

        def rdfragW(r, n, off):
            v = [vW0, vW1][n]
            return [f"ds_read_b64_tr_b16 v[{r}:{r+1}], v{v} offset:{off}",
                    f"ds_read_b64_tr_b16 v[{r+2}:{r+3}], v{v} offset:{off+512}"]

        def rdW(buf):
            o_ = []
            for n in range(2):
                for t in range(3):
                    o_ += rdfragW(WB[buf] + (t * 2 + n) * 4, n, t * 1024)
            return o_

        def rdfragWq(r, t):
            return [f"ds_read_b64_tr_b16 v[{r}:{r+1}], v{vWq0} offset:{t*1024}",
                    f"ds_read_b64_tr_b16 v[{r+2}:{r+3}], v{vWq1} offset:{t*1024}"]

        def rdX(buf):
            return [f"ds_read_b128 {q4(XB[buf]+4*s)}, v{vXa} offset:{s*1024}" for s in range(8)]

        def rdfragXq(r, j):
            if not sp:
                return f"ds_read_b128 {q4(r)}, v{vXq} offset:{j*1024}"
            v, off = [(vXqA, 0), (vXq, 0), (vXq, 1024), (vXqD, 0)][j]
            return f"ds_read_b128 {q4(r)}, v{v} offset:{off}"

        def rdQ():
            o_ = [rdfragXq(XQ + 4 * j, j) for j in range(4 if sp else 3)]
            if sp:
                for t in range(3):
                    o_ += rdfragWq(WQ + 4 * t, t)
            return o_

        def updB():
            o_ = [f"s_add_u32 s{sOB}, s{sOB}, {c.BSL}", f"s_cmp_eq_u32 s{sOB}, {c.NBS*c.BSL}", f"s_cselect_b32 s{sOB}, 0, s{sOB}",
                  f"v_add_u32 v{vW0}, s{sOB}, v{bW}", f"v_xor_b32 v{vW1}, 32, v{vW0}"]
            if sp:
                o_ += [f"v_add_u32 v{vWq0}, s{sOB}, v{bWq}", f"v_xor_b32 v{vWq1}, 128, v{vWq0}"]
            return o_

        def updXq_new():
            o_ = [f"v_add_u32 v{vXq}, s{sDQ}, v{vXa}"]
            if sp:
                o_ += [f"s_and_b32 s3, s{sOA}, s{sMA}", f"v_add_u32 v{vXqA}, s3, v{bXqA}",
                       f"s_and_b32 s3, s{sOA}, s{sMD}", f"v_add_u32 v{vXqD}, s3, v{bXqD}"]
            return o_

        def updXq_xor():
            return [f"v_xor_b32 v{v}, 64, v{v}" for v in ([vXq, vXqA, vXqD] if sp else [vXq])]

        def updA(newstage):
            if not newstage:
                return [f"v_xor_b32 v{vXa}, 64, v{vXa}"] + updXq_xor()
            return [f"s_add_u32 s{sOA}, s{sOA}, {c.ASL}", f"s_cmp_eq_u32 s{sOA}, {3*c.ASL}", f"s_cselect_b32 s{sOA}, 0, s{sOA}",
                    f"v_add_u32 v{vXa}, s{sOA}, v{bXa}"] + updXq_new()

        def mfma(d, wr, xr, first):
            cc = "0" if first else q4(d)
            return f"v_mfma_f32_16x16x32_bf16 {q4(d)}, {q4(wr)}, {q4(xr)}, {cc}"

        def taps(n):
            return (0, 1, 2) if (n == 0 or not o.snake) else (2, 1, 0)

        def group_q(Wf, Wqf, Xqf):
            r = []
            for n in range(2):
                for t in taps(n):
                    if sp:
                        r.append((acc(8, n), Wqf(t), Xqf(n + t)))
                    else:
                        r.append((acc(8, n), Wf(t, n), Xqf(t)))
            return r

        def group_row(s, Wf, Xf):
            r = []
            for n in range(2):
                for t in taps(n):
                    if 0 <= s + t - 1 < 8:
                        r.append((acc(s, n), Wf(t, n), Xf(s + t - 1)))
            return r

        def step_ops(buf):
            Wf = lambda t, n: WB[buf] + (t * 2 + n) * 4
            ops = group_q(Wf, lambda t: WQ + 4 * t, lambda j: XQ + 4 * j)
            for s in range(8):
                ops += group_row(s, Wf, lambda si: XB[buf] + 4 * si)
            assert len(ops) == 50
            return ops

        for s in rdW(0) + rdQ() + rdX(0) + updB() + updA(False):
            a(s)
        a("s_waitcnt lgkmcnt(0)")
        a("s_barrier")
        self.stamp(4)

        def step(buf, tail, first=False, it_stamp=False):
            ops = step_ops(buf)
            seen = set()
            slots = [[] for _ in range(50)]
            early = rdW(1 - buf) + rdX(1 - buf)
            fill = early[:6] + rdQ() + early[6:]
            for k, s in enumerate(fill):
                slots[k].append(s)
            pos = len(fill)
            upd = updB() + updA(buf == 0) + tail
            per = 1 if len(upd) <= 48 - pos else 2
            assert pos + (len(upd) + per - 1) // per <= 49
            for k, s in enumerate(upd):
                slots[pos + k // per].append(s)
            for m, (d, wr, xr) in enumerate(ops):
                if m == 49:
                    if o.diag and it_stamp:
                        a("s_memtime s[98:99]")
                    a("s_waitcnt lgkmcnt(0)")
                    if o.diag and it_stamp:
                        a(f"s_sub_u32 m0, 21, s{sCNT}")
                        a("s_nop 0")
                        a("v_writelane_b32 v15, s98, m0")
                        a(f"s_cmp_lg_u32 s{sCNT}, 0")
                a(mfma(d, wr, xr, first and d not in seen))
                seen.add(d)
                for s in slots[m]:
                    a(s)

        step(0, [], first=True)
        a("s_barrier")
        self.L.append(f".p2align {o.lalign}")
        self.lab(f"L_cloop_{tag}")
        step(1, [])
        a("s_barrier")
        step(0, [f"s_sub_u32 s{sCNT}, s{sCNT}, 1", f"s_cmp_lg_u32 s{sCNT}, 0"], it_stamp=True)
        a("s_barrier")
        a(f"s_cbranch_scc1 L_cloop_{tag}")
        self.stamp(5)

        vXa1 = bXa
        vXq1 = 9 if not sp else None
        vWlo0, vWlo1 = bW, 15 if not o.diag else 255
        frags = {}
        ops = [(d, ("fix", w), ("fix", x)) for (d, w, x) in step_ops(1)]
        Wf = lambda f: (lambda t, n: ("W", f, t, n))
        Xf = lambda f: (lambda si: ("X", f, si))
        qg = lambda f: group_q(Wf(f), lambda t: ("Wq", f, t), lambda j: ("Xq", f, j))
        BAR = 50
        ops += qg(0) + qg(1)
        for f in range(4):
            ops += group_row(0, Wf(f), Xf(f))
        ops += qg(2) + qg(3)
        for s in range(1, 8):
            for f in range(4):
                ops += group_row(s, Wf(f), Xf(f))
        assert len(ops) == 250
        first_use, last_use, acc_last = {}, {}, {}
        for m, (d, w, x) in enumerate(ops):
            for fr in (w, x):
                first_use.setdefault(fr, m)
                last_use[fr] = m
            acc_last[(d - ACC) // 8] = m

        pre = []
        if sp:
            pre += [f"v_add_u32 v{vCst}, s95, v236", f"v_xor_b32 v{vXa1}, 64, v{vXa}", f"v_xor_b32 v{vWlo1}, 32, v{bW}"]
        else:
            pre += [f"v_xor_b32 v{vXa1}, 64, v{vXa}", f"v_xor_b32 v{vXq1}, 64, v{vXq}", f"v_xor_b32 v{vW1}, 32, v{bW}"]

        def loads_of(fr):
            k = fr[0]
            if k == "W":
                _, f, t, n = fr
                place = c.bplace(14 + f)
                if sp:
                    if f < 2:
                        v, off = [vW0, vW1][n], place - 2 * c.BSL
                    else:
                        v, off = [vWlo0, vWlo1][n], place
                else:
                    v, off = [bW, vW1][n], place
                off += t * 1024
                return [lambda r: f"ds_read_b64_tr_b16 v[{r}:{r+1}], v{v} offset:{off}",
                        lambda r: f"ds_read_b64_tr_b16 v[{r+2}:{r+3}], v{v} offset:{off+512}"]
            if k == "X":
                _, f, si = fr
                v = [vXa, vXa1][f % 2]
                return [lambda r: f"ds_read_b128 {q4(r)}, v{v} offset:{(f//2)*c.ASL + si*1024}"]
            if k == "Xq":
                _, f, j = fr
                if not sp:
                    v = [vXq, vXq1][f % 2]
                    return [lambda r: f"ds_read_b128 {q4(r)}, v{v} offset:{(f//2)*c.ASL + j*1024}"]
                return [lambda r: rdfragXq(r, j)]
            if k == "Wq":
                _, f, t = fr
                return [lambda r: rdfragWq(r, t)[0], lambda r: rdfragWq(r, t)[1]]
            if k == "C":
                return [lambda r: f"ds_read_b128 {q4(r)}, v{vCst} offset:{[0, 64, 256, 320][fr[1]]}"]
            if k == "Cq":
                return [lambda r: f"ds_read_b128 {q4(r)}, v236 offset:{[0, 256][fr[1]]}"]
            raise ValueError(fr)

        work = []
        for fr, m in first_use.items():
            if fr[0] == "fix":
                continue
            work.append([m, 0 if fr[1] < 2 else BAR, fr])
        e0 = acc_last[0] + 4
        for j in range(4):
            work.append([e0, BAR, ("C", j)])
        for j in range(2):
            work.append([e0, 0, ("T", j)])
        if sp:
            for j in range(2):
                work.append([acc_last[8] + 4, BAR, ("Cq", j)])
        work.sort(key=lambda e: e[0])
        adv = {}
        if sp:
            slot = lambda f: c.bplace(14 + f)
            for f in range(1, 4):
                u = [f"v_add_u32 v{vWq0}, {slot(f)}, v{bWq}", f"v_xor_b32 v{vWq1}, 128, v{vWq0}"]
                if f == 2:
                    u += [f"s_mov_b32 s{sOA}, {2*c.ASL}", f"s_add_u32 s3, s{sDQ}, {c.ASL}", f"v_add_u32 v{vXq}, s3, v{vXa}"] + updXq_new()[1:]
                else:
                    u += updXq_xor()
                adv[f] = u
            adv["Cq"] = ["v_add_u32 v236, s96, v236"]

        order = [0, 8, 1, 2, 3, 4, 5, 6, 7]
        reg = {}

        def epi_ops(row, packed):
            r = ACC + row * 8
            T = lambda i: reg[("T", i // 4)] + i % 4
            if sp and row == 8:
                sc = lambda i: reg[("Cq", 0)] + i % 4
                sh = lambda i: reg[("Cq", 1)] + i % 4
                cfr = [("Cq", 0), ("Cq", 1)]
            else:
                sc = lambda i: reg[("C", i // 4)] + i % 4
                sh = lambda i: reg[("C", 2 + i // 4)] + i % 4
                cfr = [("C", j) for j in range(4)]
            L_ = []
            if packed:
                for p in range(0, 8, 2):
                    L_.append((5, f"v_pk_fma_f32 v[{r+p}:{r+p+1}], v[{r+p}:{r+p+1}], v[{sc(p)}:{sc(p)+1}], v[{sh(p)}:{sh(p)+1}]", "v", [r+p, r+p+1], []))
            else:
                for i in range(8):
                    L_.append((5, f"v_fma_f32 v{r+i}, v{r+i}, v{sc(i)}, v{sh(i)}", "v", [r+i], []))
            for i in range(8):
                L_.append((8, f"v_exp_f32 v{T(i)}, v{r+i}", "t", [T(i)], []))
            if packed:
                for p in range(0, 8, 2):
                    L_.append((5, f"v_pk_fma_f32 v[{T(p)}:{T(p)+1}], v[{T(p)}:{T(p)+1}], s[{sC}:{sC+1}], s[{sC}:{sC+1}]", "v", [T(p), T(p)+1], [T(p), T(p)+1]))
            else:
                for i in range(8):
                    L_.append((5, f"v_fma_f32 v{T(i)}, v{T(i)}, s{sC}, s{sC}", "v", [T(i)], [T(i)]))
            for i in range(8):
                L_.append((8, f"v_rcp_f32 v{T(i)}, v{T(i)}", "t", [T(i)], []))
            if packed:
                for p in range(0, 8, 2):
                    L_.append((5, f"v_pk_mul_f32 v[{T(p)}:{T(p)+1}], v[{T(p)}:{T(p)+1}], v[{r+p}:{r+p+1}]", "v", [T(p), T(p)+1], [T(p), T(p)+1]))
            else:
                for i in range(8):
                    L_.append((4, f"v_mul_f32 v{T(i)}, v{T(i)}, v{r+i}", "v", [T(i)], [T(i)]))
            for p in range(4):
                L_.append((5, f"v_cvt_pk_bf16_f32 v{r+p}, v{T(2*p)}, v{T(2*p+1)}", "v", [r+p], []))
            L_.append((4, f"v_permlane16_swap_b32 v{r}, v{r+2}", "p", [r, r+2], [r, r+2]))
            L_.append((4, f"v_permlane16_swap_b32 v{r+1}, v{r+3}", "p", [r+1, r+3], [r+1, r+3]))
            vo = 237 if (sp and row == 8) else vOut
            L_.append((4, f"buffer_store_dwordx4 {q4(r)}, v{vo}, s[{sO}:{sO+3}], s{sOUT+row} offen {o.store}".rstrip(), "st", [], []))
            return L_, cfr

        busy = set(range(WB[1], WB[1] + 24, 4)) | set(range(XB[1], XB[1] + 32, 4))
        nq = 4 if sp else 3
        busy |= set(range(XQ, XQ + 4 * nq, 4))
        if sp:
            busy |= set(range(WQ, WQ + 12, 4)) | {236}
        if o.diag:
            busy |= {252}
        free = [r for r in POOL if r not in busy]
        release = {}
        for fr, m in last_use.items():
            if fr[0] == "fix":
                release.setdefault(m, []).append(fr[1])
        cnt = {"i": 0, "ds": 0, "dsdone": 0, "mf": 0}
        dsat = []
        lastw = {}
        ldidx = {}
        mf_idx = {}

        def emit(text, kind="x", writes=(), reads=()):
            need = 0
            for r in reads:
                if r in lastw:
                    i0, k0 = lastw[r]
                    d = cnt["i"] - i0 - 1
                    if k0 == "t" and kind in "vp":
                        need = max(need, 1 - d)
                    if kind == "p" and k0 in "vtp":
                        need = max(need, 2 - d)
            if need > 0:
                a(f"s_nop {need-1}")
                cnt["i"] += 1
            a(text)
            for r in writes:
                lastw[r] = (cnt["i"], kind)
            cnt["i"] += 1

        def wait_frags(frs):
            mx = max([ldidx[f] for f in frs if f in ldidx] + [-1])
            if mx >= cnt["dsdone"]:
                old = [k for k, i0 in enumerate(dsat) if cnt["mf"] - i0 >= o.landed]
                mx = max([mx] + old)
                n = min(cnt["ds"] - 1 - mx, 15)
                emit(f"s_waitcnt lgkmcnt({n})")
                cnt["dsdone"] = cnt["ds"] - n

        cur = []
        pend_pre = list(pre)
        epi = []
        epi_row = [None]
        rows_left = list(order)
        advdone = set()
        stalls = []

        def next_load(m):
            if pend_pre:
                emit(pend_pre.pop(0))
                return True
            if not cur:
                for e in work:
                    if e[1] <= m:
                        if e[0] - m > o.horizon and e[1] == 0 and m >= BAR:
                            return False
                        break
                else:
                    return False
                fr = e[2]
                if sp and fr[0] in ("Xq", "Wq") and fr[1] in adv and fr[1] not in advdone:
                    advdone.add(fr[1])
                    pend_pre.extend(adv[fr[1]])
                    return next_load(m)
                if sp and fr[0] == "Cq" and "Cq" not in advdone:
                    advdone.add("Cq")
                    pend_pre.extend(adv["Cq"])
                    return next_load(m)
                reserve = 0
                if m < BAR:
                    urgent = sum(1 for x in work if x[1] == BAR and x[0] < e[0])
                    later = sum(len(v) for k_, v in release.items() if m <= k_ < BAR)
                    reserve = max(0, urgent - later)
                if len(free) <= reserve:
                    return False
                work.remove(e)
                reg[fr] = free.pop(0)
                if fr in last_use:
                    release.setdefault(last_use[fr], []).append(reg[fr])
                if fr[0] == "T":
                    return next_load(m)
                cur.extend([(fr, g(reg[fr])) for g in loads_of(fr)])
            fr, text = cur.pop(0)
            emit(text)
            ldidx[fr] = cnt["ds"]
            dsat.append(cnt["mf"])
            cnt["ds"] += 1
            return True

        def next_epi(m, packed=False):
            if not epi:
                if not rows_left:
                    return None
                row = rows_left[0]
                if acc_last[row] > m - 1 or cnt["i"] - mf_idx[acc_last[row]] - 1 < 8:
                    return None
                need = [("T", 0), ("T", 1)] + ([("Cq", 0), ("Cq", 1)] if (sp and row == 8) else [("C", j) for j in range(4)])
                if any(f not in reg or any(x[0] == f for x in cur) for f in need):
                    return None
                rows_left.pop(0)
                ops_, cfr = epi_ops(row, packed)
                wait_frags(cfr)
                epi.extend(ops_)
                epi_row[0] = row
            cost, text, kind, wr, rd = epi.pop(0)
            emit(text, kind, wr, rd)
            if kind == "st":
                row = epi_row[0]
                free.append(ACC + row * 8 + 4)
                freed_late.append([cnt["i"] + 2, ACC + row * 8])
                if sp and row == 8:
                    free.extend([reg[("Cq", 0)], reg[("Cq", 1)]])
            return cost

        freed_late = []
        for m, (d, w, x) in enumerate(ops):
            if m == BAR:
                emit("s_barrier")
                self.stamp(6)
            for fr in (w, x):
                while fr[0] != "fix" and (fr not in ldidx or any(e[0] == fr for e in cur)):
                    stalls.append((m, fr))
                    assert next_load(m), f"cannot load {fr} at {m}"
            wait_frags([fr for fr in (w, x) if fr[0] != "fix"])
            rw = w[1] if w[0] == "fix" else reg[w]
            rx = x[1] if x[0] == "fix" else reg[x]
            mf_idx[m] = cnt["i"]
            emit(mfma(d, rw, rx, False))
            cnt["mf"] += 1
            for r in release.pop(m, []):
                free.append(r)
            for e in list(freed_late):
                if cnt["i"] >= e[0]:
                    free.append(e[1]); freed_late.remove(e)
            budget = 8
            nl = 0
            maxl = 2 if (m < BAR + 40) else 1
            while nl < maxl and budget > 0 and next_load(m + 1 if m + 1 != BAR else m):
                nl += 1
                budget -= 4
            ebud = o.ebud
            while ebud > 0:
                cst = next_epi(m + 1)
                if cst is None:
                    break
                ebud -= cst
        assert not work and not cur, (work, cur)
        if stalls:
            print(f"[{tag}] late loads:", stalls, file=sys.stderr)
        nexp = 0
        while epi or rows_left:
            cst = next_epi(10**6, packed=True)
            if cst is None:
                emit("s_nop 1")
                cnt["i"] += 1
            else:
                nexp += cst
        print(f"[{tag}] exposed epilogue issue cycles ~{nexp}", file=sys.stderr)
        self.stamp(2)
        if o.diag or o.enc == 7:
            a("s_waitcnt vmcnt(0)")
        self.stamp(7)
        if o.enc >= 0:
            a("s_waitcnt lgkmcnt(0)")
            a("s_sub_u32 s64, s64, s60")
            a("s_mul_i32 s64, s64, 10")
            a("s_add_u32 s64, s64, 2000")
            if o.encwg >= 0:
                a(f"s_cmp_eq_u32 s2, {o.encwg}")
                a("s_cselect_b32 s64, s64, 0")
            self.spin("s64", "x" + tag)
        if o.padend:
            self.spin(o.padend, "e" + tag)
        self.diag_out(8)
        a("s_endpgm")

    def build(self):
        L = self.L
        L.append(HEADER + "; @launch grid=(256,1,1) block=(512,1,1) lds=163840")
        L.append('.amdgcn_target "amdgcn-amd-amdhsa--gfx950"')
        L.append(".text")
        L.append(f".globl {NAME}")
        L.append(".p2align 8")
        L.append(f".type {NAME},@function")
        self.lab(NAME)
        self.entry()
        self.loader(Cfg(False))
        self.lab("L_cons")
        self.cons_common()
        self.consumer(Cfg(False))
        self.lab("L_load_s")
        self.loader(Cfg(True))
        self.lab("L_cons_s")
        self.consumer(Cfg(True))
        self.lab("L_end")
        self.a("s_endpgm")
        L.append('.section .rodata,"a"')
        L.append(".p2align 6")
        L.append(f".amdhsa_kernel {NAME}")
        L.append("  .amdhsa_next_free_vgpr 256\n  .amdhsa_next_free_sgpr 102\n  .amdhsa_accum_offset 256\n"
                 "  .amdhsa_group_segment_fixed_size 0\n  .amdhsa_kernarg_size 72\n  .amdhsa_user_sgpr_count 2\n"
                 "  .amdhsa_user_sgpr_kernarg_segment_ptr 1\n  .amdhsa_system_sgpr_workgroup_id_x 1\n"
                 "  .amdhsa_float_denorm_mode_32 3")
        L.append(".end_amdhsa_kernel")
        return "\n".join(L) + "\n"


def parse(argv=None):
    import argparse
    ap = argparse.ArgumentParser()
    ap.add_argument("-o", default="standalone__batchnorm__sampling.s")
    ap.add_argument("--diag", action="store_true")
    ap.add_argument("--store", default="sc0 sc1 nt")
    ap.add_argument("--prio", type=int, default=0)
    ap.add_argument("--dfx", default="")
    ap.add_argument("--dfw", default="")
    ap.add_argument("--padend", type=int, default=0)
    ap.add_argument("--enc", type=int, default=-1)
    ap.add_argument("--encwg", type=int, default=-1)
    ap.add_argument("--cpf", type=int, default=3)
    ap.add_argument("--snake", type=int, default=1)
    ap.add_argument("--lalign", type=int, default=6)
    ap.add_argument("--horizon", type=int, default=40)
    ap.add_argument("--ebud", type=int, default=9)
    ap.add_argument("--landed", type=int, default=6)
    ap.add_argument("--parat", type=int, default=6)
    ap.add_argument("--pfirst", type=int, default=0)
    ap.add_argument("--pro_n", default="SA GO B0 A0h0 SP P2 A0h1 B1 bar-1 A1h0 bar0 A1h1 B2 PAR A2h0")
    ap.add_argument("--pro_s", default="SA GO B0 A0h0 SP P2 A0h1 B1 bar-1 A1h0 bar0 A1h1 B2 PAR A2h0 B3")
    ap.add_argument("--pins", default="0:2 2:2 4:3")
    return ap.parse_args(argv)


if __name__ == "__main__":
    o = parse()
    open(o.o, "w").write(Gen(o).build())
```
